```python
import torch

def _softmax(x, axis=-1):
    return torch.softmax(x, dim=axis)
def _gelu(x):
    return torch.nn.functional.gelu(x, approximate="tanh")
def _silu(x):
    return torch.nn.functional.silu(x)
def _sigmoid(x):
    return torch.sigmoid(x)
def _layernorm(x, axis=-1, eps=1e-5):
    m = x.mean(dim=axis, keepdim=True)
    v = x.var(dim=axis, keepdim=True, unbiased=False)
    return (x - m) / torch.sqrt(v + eps)
def _scatter_add(tgt, idx, src, axis=0):
    return tgt.clone().index_add_(axis, idx, src)
def _segment_sum(src, seg, n):
    out = torch.zeros((n,) + src.shape[1:], dtype=src.dtype)
    return out.index_add_(0, seg, src)
def _pad(x, pw):
    flat = tuple(v for pair in reversed(pw) for v in pair)
    return torch.nn.functional.pad(x, flat)

kernel_name = 'concat_heads__linear_kernel_hedgehog__ssm_conv_s4__prompt'

def setup_inputs():

    _w = (lambda a: (lambda t: t.to(torch.bfloat16) if t.is_floating_point() else t)(torch.as_tensor(a)))
    def _A_setup():
        B, S, D, H = 1, 2048, 1024, 32
        Dh = D // H
        return {
            "x": _w((lambda *s: torch.randn(*s, dtype=torch.bfloat16) * 0.4)(B, S, D)),
            "wqkv": _w((lambda *s: torch.randn(*s, dtype=torch.bfloat16) * 0.4)(D, 3 * D)),
            "w_phi": _w((lambda *s: torch.randn(*s, dtype=torch.bfloat16) * 0.4)(H, Dh, Dh) * (Dh ** -0.5)),
            "wo": _w((lambda *s: torch.randn(*s, dtype=torch.bfloat16) * 0.05)(D, D)),
        }
    _A_in = _A_setup()

    def _B_setup():
        B, L, D, N = 1, 2048, 1024, 128
        A_re = -(lambda _x: torch.exp(torch.as_tensor(_x)))((lambda *s: torch.randn(*s, dtype=torch.bfloat16) * 3.2)(D, N))
        A_im = torch.pi * (lambda *s: torch.randn(*s, dtype=torch.bfloat16) * 0.2)(D, N)
        B_re = (lambda *s: torch.randn(*s, dtype=torch.bfloat16) * 0.8)(D, N)
        B_im = (lambda *s: torch.randn(*s, dtype=torch.bfloat16) * 0.8)(D, N)
        C_re = (lambda *s: torch.randn(*s, dtype=torch.bfloat16) * 0.8)(D, N)
        C_im = (lambda *s: torch.randn(*s, dtype=torch.bfloat16) * 0.8)(D, N)
        log_dt = (lambda *s: torch.randn(*s, dtype=torch.bfloat16) * 0.2)(D) * 0.5 - 4.0
        Dskip = (lambda *s: torch.randn(*s, dtype=torch.bfloat16) * 1.6)(D)
        return {
            "u": _w((lambda *s: torch.randn(*s, dtype=torch.bfloat16) * 0.05)(B, L, D)),
            "A_re": _w(A_re),
            "A_im": _w(A_im),
            "B_re": _w(B_re),
            "B_im": _w(B_im),
            "C_re": _w(C_re),
            "C_im": _w(C_im),
            "log_dt": _w(log_dt),
            "Dskip": _w(Dskip),
        }
    _B_in = _B_setup()

    return {
        "A_x": _A_in["x"],
        "A_wqkv": _A_in["wqkv"],
        "A_w_phi": _A_in["w_phi"],
        "A_wo": _A_in["wo"],
        "B_u": _B_in["u"],
        "B_A_re": _B_in["A_re"],
        "B_A_im": _B_in["A_im"],
        "B_B_re": _B_in["B_re"],
        "B_B_im": _B_in["B_im"],
        "B_C_re": _B_in["C_re"],
        "B_C_im": _B_in["C_im"],
        "B_log_dt": _B_in["log_dt"],
        "B_Dskip": _B_in["Dskip"],
    }

def reference(A_x, A_wqkv, A_w_phi, A_wo, B_u, B_A_re, B_A_im, B_B_re, B_B_im, B_C_re, B_C_im, B_log_dt, B_Dskip):
    def _A_ref(x, wqkv, w_phi, wo):
        B, S, D = x.shape
        H = 32; Dh = D // H
        qkv = (lambda x, *d: x.permute(*d))((x @ wqkv).reshape(B, S, 3, H, Dh), 2, 0, 3, 1, 4)
        q, k, v = qkv[0], qkv[1], qkv[2]
        pq = torch.einsum("bhsd,hdf->bhsf", q, w_phi)
        pk = torch.einsum("bhsd,hdf->bhsf", k, w_phi)
        phi_q = torch.concatenate([_softmax(pq, axis=-1), _softmax(-pq, axis=-1)], axis=-1)
        phi_k = torch.concatenate([_softmax(pk, axis=-1), _softmax(-pk, axis=-1)], axis=-1)
        kv = torch.einsum("bhsf,bhsd->bhfd", phi_k, v)
        z  = torch.einsum("bhsf->bhf", phi_k)
        num = torch.einsum("bhqf,bhfd->bhqd", phi_q, kv)
        den = torch.einsum("bhqf,bhf->bhq", phi_q, z)[..., None] + 1e-6
        o = num / den
        return (lambda x, *d: x.permute(*d))(o, 0, 2, 1, 3).reshape(B, S, D) @ wo

    def _B_ref(u, A_re, A_im, B_re, B_im, C_re, C_im, log_dt, Dskip):
        Bsz, L, D = u.shape
        dt = torch.exp(log_dt)[:, None]
        A = A_re + 1j * A_im
        Bc = B_re + 1j * B_im
        Cc = C_re + 1j * C_im
        logdA = dt * A
        dB = dt * Bc
        l = (lambda x, dt: x.to(dt))(torch.arange(L), A_re.dtype)
        P = torch.exp(logdA[:, :, None] * l[None, None, :])
        K = torch.einsum("dn,dnl,dn->dl", Cc, P, dB).real
        L2 = 2 * L
        Kp = _pad(K, ((0, 0), (0, L)))
        up = (lambda x, *d: x.permute(*d))(u, 0, 2, 1)
        up = _pad(up, ((0, 0), (0, 0), (0, L)))
        Kf = (lambda x, axes=(-2,-1): torch.fft.rfft2(x.float(), dim=axes))(Kp[:, None, :], axes=(-2, -1))
        Uf = (lambda x, axes=(-2,-1): torch.fft.rfft2(x.float(), dim=axes))(up[:, :, None, :], axes=(-2, -1))
        Yf = Uf * Kf[None, :, :, :]
        y = (lambda x, s, axes=(-2,-1): torch.fft.irfft2(x, s=s, dim=axes).to(torch.bfloat16))(Yf, (1, L2), axes=(-2, -1))[:, :, 0, :L]
        y = (lambda x, *d: x.permute(*d))(y, 0, 2, 1) + u * Dskip[None, None, :]
        return y

    a = _A_ref(A_x, A_wqkv, A_w_phi, A_wo)
    b = _B_ref(B_u, B_A_re, B_A_im, B_B_re, B_B_im, B_C_re, B_C_im, B_log_dt, B_Dskip)
    return torch.concatenate([a, b], axis=-1)
```

```python
import re

TRANS = ("v_exp_f32","v_log_f32","v_rcp_f32","v_rsq_f32","v_sqrt_f32","v_sin_f32","v_cos_f32","v_rcp_iflag_f32")
REG_RE = re.compile(r"^(-|abs\()?\|?([vas])(\d+|\[(\d+):(\d+)\])\|?\)?$")

def regs_of(op):
    op = op.strip()
    if op in ("vcc",): return {("s","vcc_lo"),("s","vcc_hi")}
    if op in ("vcc_lo","vcc_hi"): return {("s",op)}
    if op == "exec": return {("s","exec")}
    if op == "m0": return {("s","m0")}
    m = REG_RE.match(op)
    if not m: return set()
    k = m.group(2)
    if m.group(4) is not None: return {(k,i) for i in range(int(m.group(4)), int(m.group(5))+1)}
    return {(k,int(m.group(3)))}

class Ins:
    __slots__=("text","mn","ops","defs","uses","cls","passes","srcc","dpp","label","target","nops","ab")
    def __init__(self, text):
        self.text = text; self.label=None; self.target=None; self.nops=0
        t = text.split(";")[0].strip()
        self.defs=set(); self.uses=set(); self.cls="other"; self.passes=0; self.srcc=set(); self.dpp=False; self.ab=set()
        if t.endswith(":"):
            self.label=t[:-1]; self.cls="label"; self.mn=""; self.ops=[]; return
        if not t or t.startswith("."):
            self.cls="dir"; self.mn=""; self.ops=[]; return
        p = t.split(None,1); mn=p[0]; self.mn=mn
        rest = p[1] if len(p)>1 else ""
        ops=[o.strip() for o in re.split(r",(?![^\[]*\])", rest)] if rest else []
        mods=""
        if ops:
            last=ops[-1].split(None,1)
            if len(last)>1 and not last[0].endswith("("):
                ops[-1]=last[0]; mods=last[1]
        self.ops=ops
        R=lambda i: regs_of(ops[i]) if i<len(ops) else set()
        allr=lambda a: set().union(*[R(i) for i in range(a,len(ops))]) if len(ops)>a else set()
        if mn.startswith("v_mfma"):
            self.cls="mfma"; self.defs=R(0); self.ab=R(1)|R(2); self.srcc=R(3); self.uses=self.ab|self.srcc
            if "32x32x16" in mn: self.passes=8
            elif "16x16x32" in mn: self.passes=4
            else: raise ValueError("mfma passes? "+mn)
        elif mn.startswith("v_"):
            self.cls="valu"
            base=mn.replace("_e32","").replace("_e64","").replace("_dpp","").replace("_sdwa","")
            if base in TRANS: self.cls="trans"
            self.dpp = ("dpp" in mn) or any(x in mods for x in ("row_shr","row_shl","row_ror","quad_perm","wave_sh","wave_ro","row_bcast","row_mirror","row_half_mirror","row_newbcast"))
            if base.startswith("v_permlane") and "swap" in base:
                self.defs=R(0)|R(1); self.uses=R(0)|R(1); self.cls="permlane"
            elif base.startswith("v_cmp"):
                self.defs=R(0); self.uses=allr(1)
            elif base in ("v_add_co_u32","v_sub_co_u32","v_subrev_co_u32","v_addc_co_u32","v_subb_co_u32"):
                self.defs=R(0)|R(1); self.uses=allr(2)
            elif base in ("v_readfirstlane_b32","v_readlane_b32"):
                self.defs=R(0); self.uses=allr(1); self.cls="readlane"
            elif base=="v_nop": pass
            else:
                self.defs=R(0); self.uses=allr(1)
                if base in ("v_fmac_f32","v_pk_fmac_f16","v_dot2c_f32_bf16","v_fmac_f16","v_writelane_b32") or self.dpp or "sdwa" in mn: self.uses|=R(0)
                if base=="v_cndmask_b32" and len(ops)==3: self.uses|=regs_of("vcc")
        elif mn.startswith("ds_"):
            self.cls="ds"
            if mn.startswith("ds_read") or "rtn" in mn or "permute" in mn or "swizzle" in mn:
                self.defs=R(0); self.uses=allr(1)
            else: self.uses=allr(0)
        elif mn.startswith("buffer_") or mn.startswith("global_"):
            self.cls="vmem"
            islds = (" lds" in " "+mods) or "_lds_" in mn
            if islds: self.uses=allr(0)|{("s","m0")}; self.cls="vmemlds"
            elif "load" in mn: self.defs=R(0); self.uses=allr(1)
            elif "atomic" in mn:
                if "sc0" in mods:
                    if mn.startswith("global_"): self.defs=R(0); self.uses=allr(1)
                    else: self.defs=R(0); self.uses=allr(0)
                else: self.uses=allr(0)
            elif "store" in mn:
                self.uses=allr(0)
                if "x4" in mn or "x3" in mn:
                    self.cls="vmemwide"; self.srcc = R(0) if mn.startswith("buffer_") else R(1)
            else: self.uses=allr(0)
        elif mn.startswith("s_"):
            self.cls="salu"
            if mn=="s_nop": self.nops=int(ops[0],0)+1
            elif mn.startswith("s_cbranch") or mn=="s_branch": self.target=ops[0]
            elif mn.startswith("s_cmp") or mn in ("s_waitcnt","s_barrier","s_endpgm","s_setprio","s_sleep"): self.uses=allr(0)
            else:
                self.defs=R(0); self.uses=allr(1)
                if "saveexec" in mn: self.defs|={("s","exec")}
        else: raise ValueError("unknown instr: "+text)

VAL=("valu","trans","permlane","readlane")
def need(p, c):
    n=0
    vd={r for r in p.defs if r[0] in "va"}; sd={r for r in p.defs if r[0]=="s"}
    if p.cls in VAL:
        if c.cls=="mfma" and vd & c.uses: n=max(n,2)
        if c.cls=="permlane" and vd & c.uses: n=max(n,2)
        if c.cls=="readlane" and vd & c.uses: n=max(n,1)
        if c.dpp and vd & c.uses: n=max(n,2)
        if p.cls=="trans" and c.cls in VAL and c.cls!="trans" and vd & c.uses: n=max(n,1)
        if p.cls=="trans" and c.cls in ("ds","vmem","vmemwide","vmemlds") and vd & c.uses: n=max(n,1)
        if sd:
            if c.cls in VAL+("mfma",) and sd & c.uses: n=max(n,4 if c.cls=="readlane" else 2)
            if c.cls in ("vmem","vmemlds","vmemwide") and sd & c.uses: n=max(n,5)
            if c.cls=="salu" and sd & c.uses: n=max(n,2)
        if ("sdwa" in p.mn or p.mn.startswith("v_pk_")) and c.cls in VAL and vd & (c.uses|c.defs): n=max(n,1)
    if p.cls=="mfma":
        P=p.passes
        if c.cls=="mfma":
            if p.defs & c.ab: n=max(n,P+4)
            if p.defs & c.srcc and not (p.defs==c.srcc and p.passes==c.passes): n=max(n,P+2)
            if p.defs & c.defs and not (p.defs==c.defs and p.passes==c.passes and c.srcc==c.defs): n=max(n,P+2)
        elif c.cls in VAL or c.cls in ("ds","vmem","vmemlds","vmemwide"):
            if p.defs & (c.uses|c.defs): n=max(n,P+4)
            if c.cls in VAL and p.srcc & c.defs: n=max(n,P-1)
            if c.cls in ("ds","vmem") and p.srcc & c.defs: n=max(n,P-1)
    if p.cls=="vmemwide":
        if p.srcc & c.defs: n=max(n,2)
    if p.cls=="salu" and ("s","m0") in p.defs and c.cls=="vmemlds": n=max(n,1)
    return n

class Prog:
    def __init__(self): self.ins=[]
    def __call__(self, text):
        for line in text.split("\n"):
            line=line.strip()
            if line: self.ins.append(Ins(line))
    def finish(self, verbose=False):
        ins=self.ins; total=0
        lab={x.label:i for i,x in enumerate(ins) if x.label}
        srcs={}
        for i,x in enumerate(ins):
            if x.target is not None: srcs.setdefault(lab[x.target],[]).append(i)
        def preds(i):
            r=[]
            if i>0 and not (ins[i-1].mn in ("s_branch","s_endpgm")): r.append(i-1)
            r+=srcs.get(i,[])
            return r
        pad={}
        for i,c in enumerate(ins):
            if c.cls in ("label","dir"): continue
            worst=0; why=None; stack=[(j,0) for j in preds(i)]; seen={}
            while stack:
                j,d=stack.pop()
                if d>=20 or seen.get(j,99)<=d: continue
                seen[j]=d; p=ins[j]
                if p.cls in ("label","dir"): nd=d
                else:
                    k=need(p,c)
                    if k-d>worst: worst=k-d; why=p.text
                    nd=d+(p.nops if p.nops else 1)+pad.get(j,0)
                for q in preds(j): stack.append((q,nd))
            if worst>0:
                if verbose: print(f"pad {worst} before [{c.text}] due to [{why}]")
                total+=worst; pad[i]=worst
        self.padded=total
        out=[]
        for i,x in enumerate(ins):
            w=pad.get(i,0)
            while w>0:
                k=min(w,16); out.append(f"    s_nop {k-1}"); w-=k
            out.append(("" if x.cls in ("label","dir") else "    ")+x.text)
        return out

class Cnt:
    def __init__(s,A,name): s.A=A; s.q=[]; s.name=name; s.max=15 if name=="lgkmcnt" else 63
    def issue(s,text,tag=None): s.A(text); s.q.append(tag)
    def need(s,tags):
        if not isinstance(tags,(set,list)): tags={tags}
        idx=[i for i,t in enumerate(s.q) if t in tags]
        if not idx: return
        n=min(len(s.q)-1-max(idx),s.max); s.A(f"s_waitcnt {s.name}({n})")
        s.q=s.q[len(s.q)-n:] if n>0 else []
    def drain(s):
        s.A(f"s_waitcnt {s.name}(0)"); s.q=[]

def kd(name, vgpr, sgpr=102, accum=None):
    if accum is None: accum=(vgpr+3)//4*4
    return [".p2align 6", f".amdhsa_kernel {name}", f"  .amdhsa_next_free_vgpr {vgpr}", f"  .amdhsa_next_free_sgpr {sgpr}",
            f"  .amdhsa_accum_offset {accum}", "  .amdhsa_group_segment_fixed_size 0", "  .amdhsa_kernarg_size 128",
            "  .amdhsa_user_sgpr_count 2", "  .amdhsa_user_sgpr_kernarg_segment_ptr 1", "  .amdhsa_system_sgpr_workgroup_id_x 1",
            "  .amdhsa_float_denorm_mode_32 3", ".end_amdhsa_kernel"]

def assemble_file(kernels, header=()):
    L=list(header)
    for (n,g,b,lds,_,_,_) in kernels: L.append(f"; @launch kernel={n} grid=({g},1,1) block=({b},1,1) lds={lds}")
    L+=['.amdgcn_target "amdgcn-amd-amdhsa--gfx950"', ".text"]
    done=set()
    for (n,g,b,lds,p,vg,ac) in kernels:
        if n in done: continue
        done.add(n)
        L+=[f".globl {n}", ".p2align 8", f".type {n},@function", f"{n}:"]+p.finish()
    L.append('.section .rodata,"a"'); done=set()
    for (n,g,b,lds,p,vg,ac) in kernels:
        if n in done: continue
        done.add(n); L+=kd(n,vg,accum=ac)
    return "\n".join(L)+"\n"
```

```python
import sys
from asmgen import *

WS_UT = 0x0000000
WS_YT = 0x0400000
WS_O = 0x0800000
WS_KVP = 0x0C00000
WS_ZP = 0x0E00000
WS_DBG = 0x1000000
WS_SIZE = 0x10000000

STAGE = 40960
WOFF = 16384
NST = 16
SP = 3 * STAGE
TBL = 9216
WPHI_L = SP + 4 * TBL
CNT_L = SP + TBL - 16
P_L = STAGE
PSZ = 8256
X1_L = 2 * STAGE
X2_L = X1_L + 4 * 4352
LOG2E = 0x3FB8AA3B
INV2PI = 0x3E22F983
OOB = 0x7F000000
SPIN = 0x100000


def vr(a, n=1):
    return f"v{a}" if n == 1 else f"v[{a}:{a+n-1}]"


def cmul(r, z, w):
    return [f"v_pk_mul_f32 {vr(r,2)}, {vr(z,2)}, {vr(w,2)} op_sel_hi:[1,0]",
            f"v_pk_fma_f32 {vr(r,2)}, {vr(z,2)}, {vr(w,2)}, {vr(r,2)} op_sel:[1,1,0] op_sel_hi:[0,1,1] neg_lo:[1,0,0]"]


def srd(A, d, base, size, add=None):
    if add is None:
        A(f"s_mov_b32 s{d}, s{base}"); A(f"s_mov_b32 s{d+1}, s{base+1}")
    else:
        A(f"s_add_u32 s{d}, s{base}, {add}"); A(f"s_addc_u32 s{d+1}, s{base+1}, 0")
    A(f"s_mov_b32 s{d+2}, {size}"); A(f"s_mov_b32 s{d+3}, 0x20000")


def stamp(A, opt, slot):
    if opt.get("stamps"):
        A(f"s_memrealtime s[{slot}:{slot+1}]")


def softmax_pair(A, P, En, T, o_pos, o_neg, sL):
    m, nm, c2 = T, T + 2, T + 4
    A(f"v_max3_f32 v{m}, v{P}, v{P+1}, v{P+2}")
    A(f"v_max3_f32 v{nm}, -v{P}, -v{P+1}, -v{P+2}")
    for i in range(3, 15, 2):
        A(f"v_max3_f32 v{m}, v{m}, v{P+i}, v{P+i+1}")
        A(f"v_max3_f32 v{nm}, v{nm}, -v{P+i}, -v{P+i+1}")
    A(f"v_max_f32 v{m}, v{m}, v{P+15}")
    A(f"v_max_f32_e64 v{nm}, v{nm}, -v{P+15}")
    A(f"v_permlane32_swap_b32 v{m}, v{nm}")
    A(f"v_max_f32 v{m}, v{m}, v{nm}")
    A(f"v_mul_f32 v{m}, {hex(LOG2E | 0x80000000)}, v{m}")
    A(f"v_mov_b32 v{nm}, v{m}")
    A(f"v_permlane32_swap_b32 v{m}, v{nm}")
    for i in range(0, 16, 2):
        A(f"v_pk_fma_f32 {vr(En+i,2)}, {vr(P+i,2)}, s[{sL}:{sL+1}], {vr(nm,2)} op_sel_hi:[1,1,0] neg_lo:[1,0,0] neg_hi:[1,0,0]")
        A(f"v_pk_fma_f32 {vr(P+i,2)}, {vr(P+i,2)}, s[{sL}:{sL+1}], {vr(m,2)} op_sel_hi:[1,1,0]")
    for i in range(16):
        A(f"v_exp_f32 v{En+i}, v{En+i}")
        A(f"v_exp_f32 v{P+i}, v{P+i}")
    A(f"v_pk_add_f32 {vr(nm,2)}, {vr(En,2)}, {vr(En+2,2)}")
    A(f"v_pk_add_f32 {vr(m,2)}, {vr(P,2)}, {vr(P+2,2)}")
    for i in range(4, 16, 2):
        A(f"v_pk_add_f32 {vr(nm,2)}, {vr(nm,2)}, {vr(En+i,2)}")
        A(f"v_pk_add_f32 {vr(m,2)}, {vr(m,2)}, {vr(P+i,2)}")
    A(f"v_add_f32 v{nm}, v{nm}, v{nm+1}")
    A(f"v_add_f32 v{m}, v{m}, v{m+1}")
    A(f"v_permlane32_swap_b32 v{m}, v{nm}")
    A(f"v_add_f32 v{m}, v{m}, v{nm}")
    A(f"v_rcp_f32 v{m}, v{m}")
    A(f"v_mov_b32 v{nm}, v{m}")
    A(f"v_permlane32_swap_b32 v{m}, v{nm}")
    for i in range(0, 16, 2):
        A(f"v_pk_mul_f32 {vr(P+i,2)}, {vr(P+i,2)}, {vr(m,2)} op_sel_hi:[1,0]")
        A(f"v_pk_mul_f32 {vr(En+i,2)}, {vr(En+i,2)}, {vr(nm,2)} op_sel_hi:[1,0]")
    for i in range(8):
        A(f"v_cvt_pk_bf16_f32 v{o_pos+i}, v{P+2*i}, v{P+2*i+1}")
        A(f"v_cvt_pk_bf16_f32 v{o_neg+i}, v{En+2*i}, v{En+2*i+1}")


def lds_arrive_wait(A, lg, name, addr_v, one_v, tmp_v, target, stmp):
    lg.drain()
    A(f"ds_add_u32 v{addr_v}, v{one_v}")
    A(f"s_mov_b32 s79, {SPIN}")
    A(f"{name}:")
    A(f"ds_read_b32 v{tmp_v}, v{addr_v}")
    A("s_sub_u32 s79, s79, 1"); A(f"s_cbranch_scc1 {name}_x")
    A("s_waitcnt lgkmcnt(0)")
    A(f"v_readfirstlane_b32 s{stmp}, v{tmp_v}")
    A(f"s_cmp_lt_u32 s{stmp}, {target}")
    A(f"s_cbranch_scc1 {name}")
    A(f"{name}_x:")
    A("s_waitcnt lgkmcnt(0)")


MF32 = "v_mfma_f32_32x32x16_bf16"
MF16 = "v_mfma_f32_16x16x32_bf16"


def k1(opt):
    p = Prog(); A = p
    A("s_cmp_ge_u32 s2, 256"); A("s_cbranch_scc1 k1_end")
    A("s_load_dwordx16 s[4:19], s[0:1], 0")
    A("s_load_dwordx16 s[20:35], s[0:1], 64")
    stamp(A, opt, 80)
    A("s_and_b32 s36, s2, 7"); A("s_lshr_b32 s37, s2, 3")
    A("s_and_b32 s38, s36, 3"); A("s_lshl_b32 s38, s38, 2"); A("s_and_b32 s39, s37, 3"); A("s_add_u32 s38, s38, s39")
    A("s_lshr_b32 s39, s36, 2"); A("s_lshl_b32 s39, s39, 3"); A("s_lshr_b32 s41, s37, 2"); A("s_add_u32 s39, s39, s41")
    A("v_lshrrev_b32 v1, 6, v0"); A("v_and_b32 v0, 63, v0"); A("v_readfirstlane_b32 s40, v1")
    A("s_cmp_ge_u32 s40, 4"); A("s_cbranch_scc1 k1_s")
    k1_g(A, opt)
    A("k1_s:")
    k1_s(A, opt)
    A("k1_end:"); A("s_endpgm")
    return p


def k1_g(A, opt):
    lg = Cnt(A, "lgkmcnt"); vm = Cnt(A, "vmcnt")
    ACC = 16; F = [112, 132]; WP = 152; ID = 160
    A("s_and_b32 s42, s40, 1"); A("s_lshr_b32 s43, s40, 1")
    A("s_lshl_b32 s44, s38, 1"); A("s_add_u32 s44, s44, s42")
    A("s_lshl_b32 s45, s44, 1"); A("s_add_u32 s45, s45, s43"); A("s_lshl_b32 s45, s45, 10")
    A("v_lshl_add_u32 v8, v0, 4, s45")
    A("s_waitcnt lgkmcnt(0)")
    vm.issue("global_load_dwordx4 v[12:15], v8, s[8:9]", "wphi")
    A("s_lshl_b32 s46, s43, 13")
    A("v_and_b32 v8, 31, v0"); A("v_lshrrev_b32 v9, 5, v0")
    A("v_bfe_u32 v10, v8, 1, 3"); A("v_xor_b32 v10, v10, v9"); A("v_lshl_add_u32 v11, v8, 7, s46")
    for t in range(4):
        A(f"v_xor_b32 v7, {2*t}, v10"); A(f"v_lshl_add_u32 v{2+t}, v7, 4, v11")
    A("v_bfe_u32 v10, v0, 2, 2")
    A("v_lshrrev_b32 v11, 1, v10"); A("v_xor_b32 v11, s42, v11")
    A("v_lshl_add_u32 v7, v9, 3, v10"); A("v_lshlrev_b32 v7, 7, v7"); A("v_lshl_add_u32 v7, v11, 6, v7")
    A("v_bfe_u32 v11, v0, 4, 1"); A("v_lshlrev_b32 v1, 5, v11"); A("v_and_b32 v11, 3, v0"); A("v_lshl_add_u32 v1, v11, 3, v1")
    A("v_add_u32 v7, v7, v1"); A(f"v_add_u32 v6, {WOFF}, v7")
    A("v_lshl_add_u32 v10, v9, 2, v10"); A("v_lshl_add_u32 v1, v10, 6, v1")
    A("s_lshl_b32 s47, s42, 11"); A(f"s_add_u32 s47, s47, {WPHI_L}"); A("v_add_u32 v1, s47, v1")
    for r in range(96): A(f"v_mov_b32 v{ACC+r}, 0")
    A("v_lshlrev_b32 v10, 2, v9"); A("v_sub_u32 v10, v8, v10")
    A("v_mov_b32 v11, 0x3f80"); A("v_mov_b32 v7, 0x3f800000")
    for t in range(2):
        for wd in range(4):
            c0 = 16 * t + 8 * (wd >> 1) + 2 * (wd & 1); d = ID + 4 * t + wd
            A(f"v_cmp_eq_u32 vcc, {c0}, v10"); A(f"v_cmp_eq_u32 s[48:49], {c0+1}, v10")
            A(f"v_cndmask_b32 v{d}, 0, v11, vcc"); A(f"v_cndmask_b32 v{d}, v{d}, v7, s[48:49]")
    A(f"v_mov_b32 v10, {CNT_L}"); A("v_mov_b32 v168, 0"); A("v_mov_b32 v169, 0"); A("v_mov_b32 v170, 0"); A("v_mov_b32 v171, 0")
    lg.issue("ds_write_b128 v10, v[168:171]")
    A("s_lshl_b32 s47, s42, 1"); A("s_add_u32 s47, s47, s43"); A("s_lshl_b32 s47, s47, 10"); A(f"s_add_u32 s47, s47, {WPHI_L}")
    A("v_lshl_add_u32 v10, v0, 4, s47")
    vm.need("wphi")
    lg.issue("ds_write_b128 v10, v[12:15]")
    lg.drain()

    def reads(fs, t):
        b = F[fs]
        def W(g): return [(f"ds_read_b64_tr_b16 {vr(b+8+4*g+2*j,2)}, v6 offset:{t*6144+g*2048+j*512}", ("w", fs, g)) for j in range(2)]
        return [(f"ds_read_b128 {vr(b,4)}, v{2+t}", ("x", fs, 0))] + W(0) + [(f"ds_read_b128 {vr(b+4,4)}, v{2+t} offset:4096", ("x", fs, 1))] + W(1) + W(2)

    def mfs(fs):
        R = []
        for i in range(6):
            b = F[fs]; g = i // 2; blk = i % 2; a = ACC + 16 * i
            X = vr(b + 4 * blk, 4); Wf = vr(b + 8 + 4 * g, 4)
            R.append((f"{MF32} {vr(a,16)}, " + (f"{Wf}, {X}" if g < 2 else f"{X}, {Wf}") + f", {vr(a,16)}", {("x", fs, blk), ("w", fs, g)}))
        return R
    A("s_mov_b32 s50, 0"); A("s_mov_b32 s51, 0")
    A("s_barrier")
    stamp(A, opt, 82)
    if opt.get("stamps"): A("s_waitcnt lgkmcnt(0)")
    for t in range(2):
        for j in range(2):
            lg.issue(f"ds_read_b64_tr_b16 {vr(WP+4*t+2*j,2)}, v1 offset:{(16*t+8*j)*64}", "wp")
    for r, tg in reads(0, 0): lg.issue(r, tg)
    lg.need("wp")
    q0 = list(lg.q)
    slots = [2, 2, 2, 2, 0, 0]
    A("k1_gloop:")
    for t in range(4):
        fs = t & 1; R = reads(fs ^ 1, (t + 1) & 3); M = mfs(fs); ri = 0; last = (t == 3)
        if last:
            A("s_add_u32 s51, s51, 1"); A(f"s_mov_b32 s52, {STAGE}"); A("s_cmp_eq_u32 s51, 3")
            A(f"s_cselect_b32 s52, {(-2*STAGE)&0xffffffff}, s52"); A("s_cselect_b32 s51, 0, s51")
        for i, (m, tags) in enumerate(M):
            lg.need(tags); A(m)
            if last and i == 0:
                A("v_add_u32 v2, s52, v2"); A("v_add_u32 v6, s52, v6")
            for k in range(slots[i]): lg.issue(*R[ri]); ri += 1
            if last and i == 4:
                for a in (3, 4, 5): A(f"v_add_u32 v{a}, s52, v{a}")
                A("s_add_u32 s50, s50, 1"); A(f"s_cmp_lt_u32 s50, {NST}")
            if t == 2 and i == 5: lg.drain(); A("s_barrier")
    assert lg.q == q0
    A("s_cbranch_scc1 k1_gloop")
    lg.drain()
    stamp(A, opt, 84)
    Q, K, V = ACC, ACC + 32, ACC + 64
    KB = 112; VB = 128; PK = [168, 184]; PQ = [200, 216]; EN = 232; T = 248; ONES = 8
    srd(A, 56, 34, WS_SIZE)
    A(f"s_mov_b32 s54, {hex(LOG2E)}"); A(f"s_mov_b32 s55, {hex(LOG2E)}")
    for b in range(2):
        for i in range(8): A(f"v_cvt_pk_bf16_f32 v{KB+8*b+i}, v{K+16*b+2*i}, v{K+16*b+2*i+1}")
        for t in range(2): A(f"{MF32} {vr(PK[b],16)}, {vr(WP+4*t,4)}, {vr(KB+8*b+4*t,4)}, " + ("0" if t == 0 else vr(PK[b], 16)))
    QB = K
    for b in range(2):
        for i in range(8): A(f"v_cvt_pk_bf16_f32 v{VB+8*b+i}, v{V+16*b+2*i}, v{V+16*b+2*i+1}")
    for b in range(2):
        for i in range(8): A(f"v_cvt_pk_bf16_f32 v{QB+8*b+i}, v{Q+16*b+2*i}, v{Q+16*b+2*i+1}")
    for i in range(4): A(f"v_mov_b32 v{ONES+i}, 0x3f803f80")
    for b in range(2):
        for t in range(2): A(f"{MF32} {vr(PQ[b],16)}, {vr(WP+4*t,4)}, {vr(QB+8*b+4*t,4)}, " + ("0" if t == 0 else vr(PQ[b], 16)))
    KV = [16, 32]; Z = [80, 96]; PH = 64; TR = [144, 0]
    TD = [PK[0], EN]
    TA = 112
    for b in range(2):
        softmax_pair(A, PK[b], EN, T, PH, PH + 8, 54)
        TD = [PK[b], EN]
        for s in range(2):
            for t in range(2): A(f"{MF32} {vr(TD[s],16)}, {vr(PH+8*s+4*t,4)}, {vr(ID+4*t,4)}, " + ("0" if t == 0 else vr(TD[s], 16)))
        for s in range(2):
            for i in range(8): A(f"v_cvt_pk_bf16_f32 v{TA+8*s+i}, v{TD[s]+2*i}, v{TD[s]+2*i+1}")
            for t in range(2):
                c = "0" if (b == 0 and t == 0) else None
                A(f"{MF32} {vr(KV[s],16)}, {vr(TA+8*s+4*t,4)}, {vr(VB+8*b+4*t,4)}, " + (c or vr(KV[s], 16)))
                A(f"{MF32} {vr(Z[s],16)}, {vr(ONES,4)}, {vr(TA+8*s+4*t,4)}, " + (c or vr(Z[s], 16)))
    A(f"s_mul_i32 s60, s40, 4352"); A(f"s_add_u32 s60, s60, {X1_L}")
    A("s_xor_b32 s61, s40, 2"); A(f"s_mul_i32 s61, s61, 4352"); A(f"s_add_u32 s61, s61, {X1_L}")
    A("v_lshl_add_u32 v12, v0, 4, s60"); A("v_lshl_add_u32 v13, v0, 4, s61")
    A("v_lshl_add_u32 v14, v0, 2, s60"); A("v_lshl_add_u32 v15, v0, 2, s61")
    A("s_lshl_b32 s62, s42, 2"); A(f"s_add_u32 s62, s62, {CNT_L}"); A("v_mov_b32 v2, s62"); A("v_mov_b32 v3, 1")
    A("s_cmp_eq_u32 s43, 0"); A("s_cbranch_scc1 k1_keep0")
    for i in range(16): A(f"v_swap_b32 v{KV[0]+i}, v{KV[1]+i}")
    A(f"v_swap_b32 v{Z[0]}, v{Z[1]}")
    A("k1_keep0:")
    for i in range(4): lg.issue(f"ds_write_b128 v12, {vr(KV[1]+4*i,4)} offset:{1024*i}")
    lg.issue(f"ds_write_b32 v14, v{Z[1]} offset:4096")
    A("s_mov_b64 s[64:65], exec"); A("s_mov_b64 exec, 1")
    lds_arrive_wait(A, lg, "k1_spinA", 2, 3, 4, 2, 63)
    A("s_mov_b64 exec, s[64:65]")
    for i in range(4): lg.issue(f"ds_read_b128 {vr(KV[1]+4*i,4)}, v13 offset:{1024*i}", i)
    lg.issue(f"ds_read_b32 v{Z[1]}, v15 offset:4096", "z")
    A("s_lshl_b32 s66, s38, 2"); A("s_add_u32 s66, s66, s40"); A("s_lshl_b32 s66, s66, 4")
    A("s_add_u32 s67, s66, s39")
    A("s_lshl_b32 s68, s67, 11"); A(f"s_add_u32 s68, s68, {WS_KVP}"); A("s_lshl_b32 s69, s67, 7"); A(f"s_add_u32 s69, s69, {WS_ZP}")
    A("v_lshlrev_b32 v5, 4, v0"); A("v_lshlrev_b32 v6, 2, v0"); A("v_cmp_gt_u32 vcc, 32, v0"); A(f"v_mov_b32 v7, {OOB}"); A("v_cndmask_b32 v7, v7, v6, vcc")
    for i in range(4):
        lg.need(i)
        for j in range(2): A(f"v_pk_add_f32 {vr(KV[0]+4*i+2*j,2)}, {vr(KV[0]+4*i+2*j,2)}, {vr(KV[1]+4*i+2*j,2)}")
        for j in range(2): A(f"v_cvt_pk_bf16_f32 v{TA+2*i+j}, v{KV[0]+4*i+2*j}, v{KV[0]+4*i+2*j+1}")
        if i & 1: vm.issue(f"buffer_store_dwordx4 {vr(TA+4*(i>>1),4)}, v5, s[56:59], s68 offen offset:{1024*(i>>1)} sc1")
    lg.need("z")
    A(f"v_add_f32 v{Z[0]}, v{Z[0]}, v{Z[1]}")
    vm.issue(f"buffer_store_dword v{Z[0]}, v7, s[56:59], s69 offen sc1")
    stamp(A, opt, 86)
    PHQ = [16, 32]
    softmax_pair(A, PQ[0], EN, T, PHQ[0], PHQ[0] + 8, 54)
    vm.drain()
    A(f"v_mov_b32 v2, {CNT_L+8}"); A("s_mov_b64 exec, 1")
    A("ds_add_rtn_u32 v4, v2, v3"); A("s_lshl_b32 s70, s38, 2"); A("v_mov_b32 v2, s70"); A("s_waitcnt lgkmcnt(0)")
    A("v_readfirstlane_b32 s63, v4"); A("s_cmp_eq_u32 s63, 3"); A("s_cbranch_scc0 k1_nosig")
    A("global_atomic_add v2, v3, s[32:33] sc1")
    A("k1_nosig:")
    A("s_mov_b64 exec, s[64:65]")
    softmax_pair(A, PQ[1], EN, T, PHQ[1], PHQ[1] + 8, 54)
    stamp(A, opt, 88)
    A("s_mov_b64 exec, 1")
    A(f"s_mov_b32 s79, {SPIN}")
    A("k1_poll:")
    A("global_load_dword v4, v2, s[32:33] sc1"); A("s_waitcnt vmcnt(0)")
    A("v_readfirstlane_b32 s63, v4"); A("s_cmp_ge_u32 s63, 16"); A("s_cbranch_scc1 k1_polled")
    A("s_sleep 2"); A("s_sub_u32 s79, s79, 1"); A("s_cbranch_scc0 k1_poll")
    A("k1_polled:")
    A("s_mov_b64 exec, s[64:65]")
    stamp(A, opt, 90)
    LD = 112
    ZL = 48
    A("s_lshl_b32 s68, s66, 11"); A(f"s_add_u32 s68, s68, {WS_KVP}"); A("s_lshl_b32 s69, s66, 7"); A(f"s_add_u32 s69, s69, {WS_ZP}")
    IDC = 64
    for i in range(8): A(f"v_mov_b32 v{IDC+i}, v{ID+i}")
    for i in range(8): vm.issue(f"buffer_load_dword v{ZL+i}, v6, s[56:59], s69 offen offset:{256*i} sc1", ("z", i))
    for r in range(16):
        for i in range(2):
            vm.issue(f"buffer_load_dwordx4 {vr(LD+8*r+4*i,4)}, v5, s[56:59], s68 offen offset:{(r&1)*2048+1024*i} sc1", (r, i))
        if r & 1 and r < 15: A("s_add_u32 s68, s68, 4096")
    RED = 80
    vm.need(("z", 7))
    for i in range(0, 8, 2): A(f"v_add_f32 v{ZL+i}, v{ZL+i}, v{ZL+i+1}")
    A(f"v_add_f32 v{ZL}, v{ZL}, v{ZL+2}"); A(f"v_add_f32 v{ZL+4}, v{ZL+4}, v{ZL+6}"); A(f"v_add_f32 v{ZL}, v{ZL}, v{ZL+4}")
    A(f"v_mov_b32 v{ZL+1}, v{ZL}"); A(f"v_permlane32_swap_b32 v{ZL}, v{ZL+1}"); A(f"v_add_f32 v{ZL}, v{ZL}, v{ZL+1}")
    A(f"v_cvt_pk_bf16_f32 v{ZL}, v{ZL}, v{ZL}")
    A("v_and_b32 v8, 31, v0"); A("v_lshrrev_b32 v9, 4, v8"); A("v_lshlrev_b32 v9, 5, v9")
    A("v_bfe_u32 v10, v8, 2, 1"); A("v_lshl_add_u32 v9, v10, 4, v9"); A("v_bfe_u32 v10, v8, 3, 1"); A("v_lshl_add_u32 v9, v10, 3, v9")
    A("v_and_b32 v10, 3, v8"); A("v_lshl_add_u32 v9, v10, 1, v9")
    A("s_lshl_b32 s70, s42, 7"); A(f"s_add_u32 s70, s70, {X2_L+8192}"); A("s_lshl_b32 s71, s43, 6"); A("s_add_u32 s71, s71, s70"); A("v_add_u32 v9, s71, v9")
    lg.issue(f"ds_write_b16 v9, v{ZL}")
    A("v_lshrrev_b32 v10, 5, v0"); A("v_lshl_add_u32 v10, v10, 4, s70")
    A("s_lshl_b32 s71, s40, 11"); A(f"s_add_u32 s71, s71, {X2_L}"); A("v_add_u32 v12, s71, v5")
    A("s_lshl_b32 s71, s42, 11"); A(f"s_add_u32 s71, s71, {X2_L}"); A("v_add_u32 v13, s71, v5")
    for r in range(16):
        for i in range(2):
            vm.need((r, i))
            A(f"{MF32} {vr(RED,16)}, {vr(IDC+4*i,4)}, {vr(LD+8*r+4*i,4)}, " + ("0" if (r == 0 and i == 0) else vr(RED, 16)))
    A("s_lshl_b32 s62, s42, 2"); A(f"s_add_u32 s62, s62, {CNT_L}"); A("v_mov_b32 v2, s62")
    KF = 112
    for i in range(8): A(f"v_cvt_pk_bf16_f32 v{KF+i}, v{RED+2*i}, v{RED+2*i+1}")
    for i in range(2): lg.issue(f"ds_write_b128 v12, {vr(KF+4*i,4)} offset:{1024*i}")
    A("s_mov_b64 exec, 1")
    lds_arrive_wait(A, lg, "k1_spinC", 2, 3, 4, 4, 63)
    A("s_mov_b64 exec, s[64:65]")
    for s in range(2):
        for t in range(2):
            lg.issue(f"ds_read_b128 {vr(KF+8*s+4*t,4)}, v13 offset:{4096*s+1024*t}", ("k", s, t))
            lg.issue(f"ds_read_b128 {vr(KF+16+8*s+4*t,4)}, v10 offset:{64*s+32*t}", ("z", s, t))
    NUM = [144, 160]; DEN = [176, 192]
    for s in range(2):
        for t in range(2):
            for b in range(2):
                c = "0" if (s == 0 and t == 0) else None
                lg.need(("z", s, t))
                A(f"{MF32} {vr(DEN[b],16)}, {vr(KF+16+8*s+4*t,4)}, {vr(PHQ[b]+8*s+4*t,4)}, " + (c or vr(DEN[b], 16)))
    for s in range(2):
        for t in range(2):
            for b in range(2):
                c = "0" if (s == 0 and t == 0) else None
                A(f"{MF32} {vr(NUM[b],16)}, {vr(KF+8*s+4*t,4)}, {vr(PHQ[b]+8*s+4*t,4)}, " + (c or vr(NUM[b], 16)))
    A("s_lshl_b32 s70, s39, 1"); A("s_add_u32 s70, s70, s43"); A("s_lshl_b32 s70, s70, 17"); A("s_lshl_b32 s71, s44, 11")
    A("s_add_u32 s70, s70, s71"); A(f"s_add_u32 s70, s70, {WS_O}"); A("s_add_u32 s71, s70, 65536")
    for b in range(2):
        A(f"v_add_f32 v{DEN[b]}, 0x358637bd, v{DEN[b]}"); A(f"v_rcp_f32 v{DEN[b]}, v{DEN[b]}")
    for b in range(2):
        for i in range(0, 16, 2): A(f"v_pk_mul_f32 {vr(NUM[b]+i,2)}, {vr(NUM[b]+i,2)}, {vr(DEN[b],2)} op_sel_hi:[1,0]")
        for i in range(8): A(f"v_cvt_pk_bf16_f32 v{208+8*b+i}, v{NUM[b]+2*i}, v{NUM[b]+2*i+1}")
        for t in range(2): A(f"buffer_store_dwordx4 {vr(208+8*b+4*t,4)}, v5, s[56:59], s{70+b} offen offset:{1024*t}")
    if opt.get("stamps"):
        A("s_waitcnt vmcnt(0)"); stamp(A, opt, 92); write_stamps(A, 0)
    A("s_endpgm")


def write_stamps(A, base):
    A("s_waitcnt lgkmcnt(0)")
    A("s_lshl_b32 s70, s2, 3"); A("s_add_u32 s70, s70, s40"); A("s_lshl_b32 s70, s70, 5"); A(f"s_add_u32 s70, s70, {WS_DBG+base}")
    for i in range(8): A(f"v_mov_b32 v{16+i}, s{80+2*i}")
    A("v_mov_b32 v12, s70")
    A("global_store_dwordx4 v12, v[16:19], s[34:35]"); A("global_store_dwordx4 v12, v[20:23], s[34:35] offset:16")


def k1_s(A, opt):
    lg = Cnt(A, "lgkmcnt"); vm = Cnt(A, "vmcnt")
    A("s_sub_u32 s41, s40, 4")
    A("v_lshrrev_b32 v1, 3, v0"); A("s_lshl_b32 s42, s41, 5"); A("v_add_u32 v5, s42, v1"); A("v_lshlrev_b32 v5, 11, v5")
    A("v_and_b32 v2, 7, v0"); A("v_lshrrev_b32 v3, 4, v0")
    for i in range(4):
        A(f"v_xor_b32 v4, {4*(i&1)}, v3"); A("v_xor_b32 v4, v4, v2"); A("v_lshl_add_u32 v4, v4, 4, v5")
        A(f"v_add_u32 v{8+i}, {16384*i-1024*i}, v4")
    A("s_lshl_b32 s42, s41, 4"); A("v_add_u32 v5, s42, v1"); A("v_mul_u32_u24 v5, 6144, v5"); A("s_lshl_b32 s42, s38, 7"); A("v_add_u32 v5, s42, v5")
    A("v_bfe_u32 v3, v0, 4, 1"); A("v_lshlrev_b32 v4, 2, v3"); A("v_xor_b32 v4, v4, v2"); A("v_lshl_add_u32 v4, v4, 4, v5")
    for half in range(2):
        for g in range(3):
            idx = 2 * g + half
            A(f"v_add_u32 v{12+idx}, {half*8*6144+g*2048-1024*(idx&3)}, v4")
    A("s_lshl_b32 s43, s41, 12"); A("s_mul_i32 s44, s41, 6144"); A(f"s_add_u32 s44, s44, {WOFF}")
    A("s_lshr_b32 s45, s37, 2"); A("s_add_u32 s45, s45, s37")
    A("s_lshl_b32 s46, s39, 18")
    A("s_lshl_b32 s47, s36, 5"); A("s_add_u32 s47, s47, s37"); A("s_lshl_b32 s47, s47, 2"); A("s_add_u32 s47, s47, s41")
    A("v_and_b32 v18, 31, v0"); A("s_lshl_b32 s60, s47, 8"); A("v_lshl_add_u32 v19, v18, 3, s60")
    A("s_lshl_b32 s60, s47, 1"); A("v_mov_b32 v20, s60")
    A("s_waitcnt lgkmcnt(0)")
    srd(A, 48, 4, 0x40000, add="s46"); srd(A, 52, 6, 0x600000)

    def issue(i, fill):
        buf = (i % 3) * STAGE
        A(f"s_add_u32 s60, s45, {i&3}"); A("s_and_b32 s60, s60, 3")
        if i & 12: A(f"s_or_b32 s60, s60, {i&12}")
        A("s_lshl_b32 s61, s60, 7"); A(f"s_mul_i32 s62, s60, {64*6144}")
        L = []
        for k in range(4): L.append((f"s_add_u32 m0, s43, {buf}" if k == 0 else None, f"buffer_load_dwordx4 v{8+k}, s[48:51], s61 offen offset:{1024*k} lds"))
        for k in range(4): L.append((f"s_add_u32 m0, s44, {buf}" if k == 0 else None, f"buffer_load_dwordx4 v{12+k}, s[52:55], s62 offen offset:{1024*k} lds"))
        for k in range(2): L.append((f"s_add_u32 m0, s44, {buf+4096}" if k == 0 else None, f"buffer_load_dwordx4 v{16+k}, s[52:55], s62 offen offset:{1024*k} lds"))
        n = len(fill); done = 0
        for k, (m, l) in enumerate(L):
            if m: A(m)
            vm.issue(l, ("st", i))
            upto = (n * (k + 1)) // len(L)
            while done < upto: fill[done](); done += 1

    issue(0, [])
    RAW = 24
    for a in range(6): vm.issue(f"global_load_dwordx2 {vr(RAW+2*a,2)}, v19, s[{14+2*a}:{15+2*a}]", "par")
    vm.issue("global_load_ushort v21, v20, s[26:27]", "par"); vm.issue("global_load_ushort v22, v20, s[28:29]", "par")
    issue(1, [])
    issue(2, [])
    UIN = 128; UOUT = 160
    srd(A, 56, 34, WS_SIZE); srd(A, 64, 12, 0x400000)
    A("s_lshr_b32 s68, s37, 4"); A("s_lshl_b32 s69, s36, 1"); A("s_add_u32 s68, s68, s69")
    A("s_and_b32 s69, s37, 15")
    A("s_lshl_b32 s70, s41, 3"); A("v_add_u32 v5, s70, v1")
    A("s_lshl_b32 s70, s69, 18"); A("s_lshl_b32 s71, s68, 7"); A("s_add_u32 s70, s70, s71")
    A("v_lshlrev_b32 v6, 14, v5"); A("v_lshl_add_u32 v6, v2, 4, v6"); A("v_add_u32 v6, s70, v6")
    A("s_lshl_b32 s70, s68, 18"); A("s_lshl_b32 s71, s69, 8"); A("s_add_u32 s70, s70, s71"); A(f"s_add_u32 s70, s70, {WS_UT}")
    A("v_lshlrev_b32 v7, 15, v2"); A("v_lshl_add_u32 v7, v5, 4, v7"); A("v_add_u32 v7, s70, v7")
    A("s_cmp_ge_u32 s41, 2"); A(f"s_cselect_b32 s70, {OOB}, 0"); A("v_or_b32 v6, s70, v6"); A("v_or_b32 v7, s70, v7")
    for r in range(8):
        if not r & 1: A(f"s_movk_i32 s70, {2048*r}")
        vm.issue(f"buffer_load_dwordx4 {vr(UIN+4*r,4)}, v6, s[64:67], s70 offen offset:{2048*(r&1)}", "uin")
    DT = 36; XH = 37; HB = 38; LB = 39; RB = 40; HF = "s[72:73]"
    AR, AI, W1, W256, SS, W2, W4, W8, E4, CC, GA, GB, GC, LA, LC, TC = 42, 43, 44, 46, 48, 50, 52, 54, 56, 58, 60, 62, 64, 66, 68, 70
    FR = 76; KD = 108
    A(f"s_mul_i32 s74, s41, {TBL}"); A(f"s_add_u32 s74, s74, {SP}")
    A("v_lshrrev_b32 v3, 5, v0"); A(f"v_cmp_eq_u32 {HF}, 1, v3")
    A(f"v_cvt_f32_u32 v{XH}, v3"); A(f"v_mul_f32 v{XH}, 0x43000000, v{XH}")
    A(f"v_lshl_add_u32 v4, v18, 2, s74")
    A(f"v_mul_u32_u24 v5, {4*144}, v3"); A(f"v_add_u32 v{HB}, v4, v5"); A(f"v_add_u32 v{HB}, {32*144}, v{HB}")
    A(f"v_mul_u32_u24 v5, {16*144}, v3"); A(f"v_add_u32 v{LB}, v4, v5")
    A(f"v_mul_u32_u24 v5, 144, v18"); A(f"v_lshl_add_u32 v5, v3, 4, v5"); A(f"v_add_u32 v{RB}, s74, v5")

    def I(text): return lambda: A(text)
    def LI(text, tag=None): return lambda: lg.issue(text, tag)

    def dtgen():
        R = [lambda: vm.need("par"),
             I("v_lshlrev_b32 v21, 16, v21"), I("v_lshlrev_b32 v22, 16, v22"),
             I(f"v_mul_f32 v4, {hex(LOG2E)}, v21"), I(f"s_mov_b32 s75, {hex(LOG2E)}"),
             I("v_fma_f32 v5, v21, s75, -v4"), I("v_fmac_f32 v5, 0x32a57060, v21"),
             I("v_exp_f32 v4, v4"), I("v_mul_f32 v5, 0x3f317218, v5"), I("v_fma_f32 v4, v4, v5, v4"),
             I(f"v_cvt_pk_bf16_f32 v{DT}, v4, v4"), I(f"v_lshlrev_b32 v{DT}, 16, v{DT}"),
             I("v_cmp_eq_u32 vcc, 0, v0"), I("s_nop 0"), I("v_cndmask_b32 v22, 0, v22, vcc")]
        return R

    def anchor(dst, x):
        R = []
        if x is None: m, ph = f"v{AR}", f"v{AI}"
        else:
            R += [I(f"v_mul_f32 v4, {x}, v{AR}"), I(f"v_mul_f32 v5, {x}, v{AI}")]; m, ph = "v4", "v5"
        R += [I(f"v_exp_f32 v4, {m}"), I(f"v_fract_f32 v5, {ph}"), I(f"v_cos_f32 v{dst}, v5"), I(f"v_sin_f32 v{dst+1}, v5"),
              I("s_nop 0"), I(f"v_pk_mul_f32 {vr(dst,2)}, {vr(dst,2)}, v[4:5] op_sel_hi:[1,0]")]
        return R

    def kpass(pi):
        R = []
        ex = [(AR, 0), (AI, 1), (GA, 2), (GA + 1, 3), (GB, 4), (GB + 1, 5)]
        for d, a in ex:
            src = RAW + 2 * a + (pi >> 1)
            R.append(I(f"v_and_b32 v{d}, 0xffff0000, v{src}" if pi & 1 else f"v_lshlrev_b32 v{d}, 16, v{src}"))
        R += [I(f"v_mul_f32 v{AR}, v{AR}, v{DT}"), I(f"v_mul_f32 v{AI}, v{AI}, v{DT}"),
              I(f"v_mul_f32 v{AR}, {hex(LOG2E)}, v{AR}"), I(f"v_mul_f32 v{AI}, {hex(INV2PI)}, v{AI}")]
        c = cmul(CC, GA, GB)
        R += [I(c[0])] + anchor(W1, None) + [I(c[1])]
        c = cmul(W2, W1, W1); a256 = anchor(W256, "0x43800000")
        R += [I(c[0]), a256[0], I(c[1])] + a256[1:3]
        c = cmul(W4, W2, W2)
        R += [I(c[0]), a256[3], I(c[1])] + a256[4:]
        c = cmul(W8, W4, W4); aS = anchor(SS, f"v{XH}")
        R += [I(c[0]), aS[0], I(c[1])] + aS[1:]
        R += [I(f"v_pk_mul_f32 {vr(CC,2)}, {vr(CC,2)}, {vr(DT,2)} op_sel_hi:[1,0]"),
              I(f"v_cndmask_b32 v{E4}, 1.0, v{W4}, {HF}"), I(f"v_cndmask_b32 v{E4+1}, 0, v{W4+1}, {HF}")]
        hi = []
        hi += [(GA, CC, E4, 0), (GB, GA, W1, 1), (GC, GB, W1, 2), (GB, GC, W1, 3),
               (GB, GA, W256, 8), (GA, GB, W2, 9), (GC, GA, W2, 10),
               (GA, GB, W256, 16), (GC, GA, W4, 17), (GB, GA, W256, 18), (GC, GB, W4, 19),
               (GA, W256, E4, None), (GC, GB, GA, 24), (GA, GC, W256, 25), (GB, GA, W256, 26), (GC, GB, W256, 27)]
        lo = [(None, SS, None, 0)]; cur = SS
        for i in range(1, 16):
            nxt = LA if cur != LA else LC
            lo.append((nxt, cur, W8, i)); cur = nxt
        for k in range(16):
            hd, hz, hw, hr = hi[k]; ld, lz, lw_, lr = lo[k]
            ch = cmul(hd, hz, hw); cl_ = cmul(ld, lz, lw_) if ld is not None else None
            R.append(I(ch[0]))
            if cl_: R.append(I(cl_[0]))
            R.append(I(ch[1]))
            if cl_: R.append(I(cl_[1]))
            lv = ld if ld is not None else lz
            tc = TC + 2 * (k & 1)
            if hr is not None: R.append(I(f"v_cvt_pk_bf16_f32 v{tc}, v{hd}, -v{hd+1}"))
            R.append(I(f"v_cvt_pk_bf16_f32 v{tc+1}, v{lv}, v{lv+1}"))
            if hr is not None: R.append(LI(f"ds_write_b32 v{HB}, v{tc} offset:{hr*144}"))
            R.append(LI(f"ds_write_b32 v{LB}, v{tc+1} offset:{lr*144}"))
        tail = [lambda: lg.drain()]
        for s in range(4):
            tail.append(LI(f"ds_read_b128 {vr(FR+8*s,4)}, v{RB} offset:{32*144+32*s}", ("f", s)))
            tail.append(LI(f"ds_read_b128 {vr(FR+8*s+4,4)}, v{RB} offset:{32*s}", ("f", s)))
        for s in range(4):
            tail.append(lambda s=s: lg.need(("f", s)))
            tail.append(I(f"{MF32} {vr(KD,16)}, {vr(FR+8*s,4)}, {vr(FR+8*s+4,4)}, " + ("0" if (pi == 0 and s == 0) else vr(KD, 16))))
        return R, tail

    def utrans():
        R = [lambda: vm.need("uin"), I("s_mov_b32 s75, 0x05040100"), I("s_mov_b32 s76, 0x07060302"), I("s_mov_b32 s77, 0")]
        for c in range(8):
            for k in range(4):
                R.append(I(f"v_perm_b32 v{UOUT+4*c+k}, v{UIN+4*(2*k+1)+(c>>1)}, v{UIN+4*(2*k)+(c>>1)}, s{75+(c&1)}"))
            R.append(lambda c=c: vm.issue(f"buffer_store_dwordx4 {vr(UOUT+4*c,4)}, v7, s[56:59], s77 offen sc1", "uout"))
            R.append(I("s_add_u32 s77, s77, 4096"))
        return R

    vm.need(("st", 0)); A("s_barrier")
    stamp(A, opt, 82)
    passes = [kpass(pi) for pi in range(4)]
    sched = {i: ([], []) for i in range(13)}
    sched[0][0].extend(dtgen())
    for pi in range(4):
        R, tail = passes[pi]; n = len(R); base = 1 + 3 * pi
        for k in range(3): sched[base + k - (1 if pi == 3 else 0) * 0][0].extend(R[(n * k) // 3:(n * (k + 1)) // 3])
        sched[base + 2][1].extend(tail)
    sched[1][1].extend(utrans())
    srd(A, 64, 32, 256)
    for i in range(13):
        vm.need(("st", i + 1)); A("s_barrier")
        fill, after = sched[i]
        if i == 4:
            A("s_lshl_b32 s75, s68, 2"); A("s_add_u32 s75, s75, 64"); A("s_cmp_eq_u32 s41, 0"); A(f"s_cselect_b32 s76, s75, {OOB}")
            A("v_mov_b32 v6, s75"); A("v_mov_b32 v7, s76"); A(f"v_mov_b32 v23, {OOB}"); A("v_cmp_eq_u32 vcc, 0, v0"); A("v_mov_b32 v41, 1")
            A("v_cndmask_b32 v7, v23, v7, vcc")
            vm.issue("buffer_atomic_add v41, v7, s[64:67], 0 offen sc1", "sig")
        issue(i + 3, fill)
        for f in after: f()
        if i == 10: vm.issue("buffer_load_dword v41, v6, s[64:67], 0 offen sc1", "flag")
    vm.need("flag")
    A("v_readfirstlane_b32 s75, v41"); A("s_cmp_ge_u32 s75, 16"); A("s_cbranch_scc1 k1_uready")
    A(f"s_mov_b32 s79, {SPIN}")
    A("k1_upoll:")
    A("s_sub_u32 s79, s79, 1"); A("s_cbranch_scc1 k1_uready")
    A("s_sleep 4"); A("buffer_load_dword v41, v6, s[64:67], 0 offen sc1"); A("s_waitcnt vmcnt(0)")
    A("v_readfirstlane_b32 s75, v41"); A("s_cmp_lt_u32 s75, 16"); A("s_cbranch_scc1 k1_upoll")
    A("k1_uready:")
    A("s_lshl_b32 s75, s47, 12"); A(f"s_add_u32 s76, s75, {WS_UT}"); A("v_lshlrev_b32 v5, 4, v0")
    for i in range(4): vm.issue(f"buffer_load_dwordx4 {vr(UIN+4*i,4)}, v5, s[56:59], s76 offen offset:{1024*i} sc1", "u")
    A("s_lshl_b32 s77, s2, 2"); A("s_add_u32 s77, s77, s41"); A("s_lshl_b32 s77, s77, 11"); A("v_and_b32 v4, 15, v0"); A("v_lshl_add_u32 v4, v4, 7, s77")
    vm.issue("global_load_dword v23, v4, s[10:11]", "wo")
    vm.need(("st", 14)); A("s_barrier")
    d = lambda a, b: KD + 4 * a + b
    A(f"s_mul_i32 s77, s41, {PSZ}"); A(f"s_add_u32 s77, s77, {P_L}")
    A("v_add_u32 v4, 31, v0"); A("v_subrev_u32 v2, 32, v0"); A(f"v_cndmask_b32 v4, v4, v2, {HF}"); A("v_lshlrev_b32 v4, 2, v4")
    lg.issue(f"ds_bpermute_b32 v44, v4, v{d(0,3)}", "prev")
    A(f"v_add_f32 v{d(0,0)}, v{d(0,0)}, v22")
    A(f"v_readlane_b32 s78, v{d(0,3)}, 63")
    A("v_lshl_add_u32 v2, v18, 5, s77"); A("v_lshl_add_u32 v4, v3, 4, v2")
    A("v_lshl_add_u32 v2, v3, 10, v2")
    A("v_and_b32 v1, 15, v0"); A("v_lshl_add_u32 v1, v1, 2, s77"); A("v_mov_b32 v45, 0")
    lg.issue("ds_write_b32 v1, v45")
    A("v_cmp_eq_u32 vcc, 0, v0"); A("v_and_b32 v1, 1, v0"); A("v_cmp_eq_u32 s[70:71], 1, v1")
    A("v_mov_b32 v46, s78"); A(f"v_cndmask_b32 v46, v{d(1,0)}, v46, vcc")
    q = 48
    A(f"v_cvt_pk_bf16_f32 v{q}, v{d(1,0)}, v46"); A(f"v_cvt_pk_bf16_f32 v{q+1}, v{d(1,0)}, v{d(1,0)}")
    A(f"v_cvt_pk_bf16_f32 v{q+2}, v{d(1,1)}, v{d(1,0)}"); A(f"v_cvt_pk_bf16_f32 v{q+3}, v{d(1,2)}, v{d(1,1)}")
    lg.issue(f"ds_write_b128 v4, {vr(q,4)} offset:{(16+256)*4}")
    for k in range(2):
        a, b = d(2, 2 * k), d(2, 2 * k + 1); q = 52 + 4 * k
        A(f"v_cvt_pk_bf16_f32 v{q}, v{a}, v{a}"); A(f"v_cvt_pk_bf16_f32 v{q+3}, v{b}, v{a}"); A(f"v_cvt_pk_bf16_f32 v47, v{b}, v{b}")
        A(f"v_mov_b32 v{q+1}, v{q}"); A(f"v_cndmask_b32 v{q+2}, v{q}, v{q+3}, {HF}"); A(f"v_cndmask_b32 v{q+3}, v{q+3}, v47, {HF}")
        lg.issue(f"ds_write_b128 v4, {vr(q,4)} offset:{(16+512+256*k)*4}")
    for k in range(2):
        a, b = d(3, 2 * k), d(3, 2 * k + 1); q = 60 + 8 * k
        A(f"v_permlane32_swap_b32 v{a}, v{b}")
        A(f"v_cvt_pk_bf16_f32 v{q}, v{a}, v{a}"); A(f"v_cvt_pk_bf16_f32 v47, v{b}, v{a}"); A(f"v_cvt_pk_bf16_f32 v{q+6}, v{b}, v{b}")
        for j in range(1, 4): A(f"v_mov_b32 v{q+j}, v{q}")
        A(f"v_mov_b32 v{q+7}, v{q+6}")
        A(f"v_cndmask_b32 v{q+4}, v{q}, v47, s[70:71]"); A(f"v_cndmask_b32 v{q+5}, v47, v{q+6}, s[70:71]")
        lg.issue(f"ds_write_b128 v2, {vr(q,4)} offset:{(16+1024+512*k)*4}")
        lg.issue(f"ds_write_b128 v2, {vr(q+4,4)} offset:{(16+1024+512*k)*4+16}")
    lg.need("prev")
    A("v_cndmask_b32 v44, v44, v45, vcc")
    q = 76
    A(f"v_cvt_pk_bf16_f32 v{q}, v{d(0,0)}, v44")
    for j in range(1, 4): A(f"v_cvt_pk_bf16_f32 v{q+j}, v{d(0,j)}, v{d(0,j-1)}")
    lg.issue(f"ds_write_b128 v4, {vr(q,4)} offset:64")
    vm.need(("st", 15)); A("s_barrier")
    A("v_min_u32 v1, 29, v0"); A("v_lshl_add_u32 v1, v1, 4, s74"); A("v_add_u32 v5, s74, v5")
    for j in range(4): A(f"v_mov_b32 v{80+j}, 0")
    lg.issue("ds_write_b128 v1, v[80:83]")
    AB = 8
    BB = 16
    A("v_and_b32 v1, 15, v0"); A("v_lshrrev_b32 v2, 4, v0")
    A("v_lshlrev_b32 v4, 3, v2"); A("v_sub_u32 v4, v1, v4"); A("v_add_u32 v4, 26, v4"); A(f"v_lshl_add_u32 v{AB}, v4, 2, s77")
    for k in range(1, 8): A(f"v_add_u32 v{AB+k}, {1024*k}, v{AB}")
    A(f"v_lshlrev_b32 v4, 5, v1"); A("v_lshl_add_u32 v4, v2, 4, v4"); A(f"v_add_u32 v{BB}, s74, v4")
    vm.need("u")
    for i in range(4): lg.issue(f"ds_write_b128 v5, {vr(UIN+4*i,4)} offset:{480+1024*i}")
    A("s_barrier")
    lg.drain()
    stamp(A, opt, 84)
    if opt.get("stamps"): A("s_waitcnt lgkmcnt(0)")
    Y = 24; FA = [56, 120]; FB = [88, 152]

    def creads(s0):
        fs = s0 & 1; R = []
        for k in range(8):
            a = FA[fs] + 4 * k; b = FB[fs] + 4 * k
            R.append((f"ds_read_b128 {vr(b,4)}, v{BB} offset:{448-64*s0+512*k}", ("b", fs, k)))
            R.append((f"ds_read2_b32 {vr(a,2)}, v{AB+k} offset0:{32*s0+6} offset1:{32*s0+4}", ("a", fs, k)))
            R.append((f"ds_read2_b32 {vr(a+2,2)}, v{AB+k} offset0:{32*s0+2} offset1:{32*s0}", ("a", fs, k)))
        return R
    for r, tg in creads(0): lg.issue(r, tg)
    for s0 in range(8):
        fs = s0 & 1; R = creads(s0 + 1) if s0 < 7 else []; ri = 0
        order = [(s1, nu) for m in range(8) for (s1, nu) in ([(m, x) for x in range(m + 1)] + [(x, m) for x in range(m)]) if s1 + nu < 8]
        for k, (s1, nu) in enumerate(order):
            n = s1 + nu
            lg.need({("a", fs, s1), ("b", fs, nu)})
            first = (s0 == 0 and first_use(order, k))
            A(f"{MF16} {vr(Y+4*n,4)}, {vr(FA[fs]+4*s1,4)}, {vr(FB[fs]+4*nu,4)}, " + ("0" if first else vr(Y + 4 * n, 4)))
            if k >= 8 and ri < len(R): lg.issue(*R[ri]); ri += 1
        while ri < len(R): lg.issue(*R[ri]); ri += 1
    stamp(A, opt, 86)
    A("v_and_b32 v4, 1, v2"); A("v_lshlrev_b32 v4, 9, v4"); A("v_lshl_add_u32 v4, v1, 5, v4"); A("v_lshrrev_b32 v2, 1, v2"); A("v_lshl_add_u32 v4, v2, 4, v4")
    A(f"s_add_u32 s76, s75, {WS_YT}")
    for k in range(4):
        q = 56 + 4 * k
        for j in range(2):
            A(f"v_cvt_pk_bf16_f32 v{q+2*j}, v{Y+8*k+4*j}, v{Y+8*k+4*j+1}"); A(f"v_cvt_pk_bf16_f32 v{q+2*j+1}, v{Y+8*k+4*j+2}, v{Y+8*k+4*j+3}")
    for k in range(4):
        q = 56 + 4 * k
        A(f"v_permlane16_swap_b32 v{q}, v{q+2}"); A(f"v_permlane16_swap_b32 v{q+1}, v{q+3}")
        A(f"buffer_store_dwordx4 {vr(q,4)}, v4, s[56:59], s76 offen offset:{1024*k}")
    if opt.get("stamps"):
        A("s_waitcnt vmcnt(0)"); stamp(A, opt, 88); write_stamps(A, 0)


def first_use(order, k):
    n = sum(order[k])
    return all(sum(o) != n for o in order[:k])


def k2(opt):
    p = Prog(); A = p
    lg = Cnt(A, "lgkmcnt"); vm = Cnt(A, "vmcnt")
    A("s_cmp_ge_u32 s2, 256"); A("s_cbranch_scc1 k2_end")
    A("s_load_dwordx2 s[10:11], s[0:1], 24")
    A("s_load_dwordx8 s[28:35], s[0:1], 96")
    stamp(A, opt, 80)
    A("s_and_b32 s36, s2, 7"); A("s_lshr_b32 s37, s2, 3")
    A("s_lshr_b32 s39, s36, 1"); A("s_lshl_b32 s39, s39, 2"); A("s_lshr_b32 s41, s37, 3"); A("s_add_u32 s39, s39, s41")
    A("s_and_b32 s38, s36, 1"); A("s_lshl_b32 s38, s38, 3"); A("s_and_b32 s42, s37, 7"); A("s_add_u32 s38, s38, s42")
    A("s_add_u32 s45, s41, s42")
    A("v_lshrrev_b32 v1, 6, v0"); A("v_and_b32 v0, 63, v0"); A("v_readfirstlane_b32 s40, v1")
    A("v_lshrrev_b32 v1, 3, v0"); A("v_and_b32 v2, 7, v0"); A("v_bfe_u32 v3, v0, 4, 1"); A("v_lshlrev_b32 v3, 2, v3"); A("v_xor_b32 v3, v3, v2")
    A("s_lshl_b32 s43, s40, 5"); A("v_add_u32 v4, s43, v1"); A("v_lshlrev_b32 v4, 11, v4"); A("v_lshl_add_u32 v4, v3, 4, v4")
    A("s_lshl_b32 s43, s38, 7"); A("v_add_u32 v4, s43, v4")
    for k in range(4): A(f"v_add_u32 v{8+k}, {16384*k-1024*k}, v4")
    A("v_lshlrev_b32 v5, 4, v0")
    A("s_lshl_b32 s43, s39, 2"); A("s_add_u32 s43, s43, s40"); A("s_lshl_b32 s43, s43, 16"); A(f"s_add_u32 s43, s43, {WS_O}")
    A("s_lshl_b32 s44, s40, 12")
    A("s_waitcnt lgkmcnt(0)")
    srd(A, 48, 10, 0x200000); srd(A, 56, 34, WS_SIZE)
    OF = 64

    def chunk_id(i):
        A(f"s_add_u32 s60, s45, {i&3}"); A("s_and_b32 s60, s60, 3")
        if i & 4: A("s_or_b32 s60, s60, 4")

    def loads(i):
        L = []
        def head():
            chunk_id(i)
            A("s_lshl_b32 s61, s60, 18"); A("s_lshl_b32 s62, s60, 13"); A("s_add_u32 s62, s62, s43"); A("s_add_u32 s63, s62, 4096")
            A(f"s_add_u32 m0, s44, {16384*i}")
        L.append(head)
        for k in range(4): L.append(lambda k=k: vm.issue(f"buffer_load_dwordx4 v{8+k}, s[48:51], s61 offen offset:{1024*k} lds", ("c", i)))
        for k in range(8): L.append(lambda k=k: vm.issue(f"buffer_load_dwordx4 {vr(OF+32*(i%3)+4*k,4)}, v5, s[56:59], s{62+(k>>2)} offen offset:{1024*(k&3)}", ("c", i)))
        return L
    for f in loads(0) + loads(1): f()
    A("v_lshrrev_b32 v12, 5, v0"); A("v_bfe_u32 v13, v0, 2, 2"); A("v_lshl_add_u32 v14, v12, 2, v13"); A("v_lshlrev_b32 v14, 7, v14")
    A("v_and_b32 v15, 1, v0"); A("v_lshl_add_u32 v14, v15, 5, v14"); A("v_bfe_u32 v15, v0, 4, 1"); A("v_lshl_add_u32 v14, v15, 4, v14")
    A("v_bfe_u32 v15, v0, 1, 1"); A("v_lshl_add_u32 v14, v15, 3, v14")
    A("v_lshrrev_b32 v13, 1, v13"); A("v_lshl_add_u32 v6, v13, 6, v14"); A("v_xor_b32 v7, 64, v6")
    A("v_add_u32 v16, 65536, v6"); A("v_add_u32 v17, 65536, v7")
    YIN = 160; YOUT = 192
    srd(A, 52, 30, 0x800000)
    A("s_lshl_b32 s64, s38, 18"); A("s_lshl_b32 s65, s39, 8"); A("s_add_u32 s64, s64, s65"); A("s_lshl_b32 s65, s40, 7"); A("s_add_u32 s64, s64, s65"); A(f"s_add_u32 s64, s64, {WS_YT}")
    A("v_lshlrev_b32 v18, 15, v1"); A("v_lshl_add_u32 v18, v2, 4, v18"); A("v_add_u32 v18, s64, v18")
    A("s_lshl_b32 s64, s39, 19"); A("s_lshl_b32 s65, s40, 18"); A("s_add_u32 s64, s64, s65"); A("s_lshl_b32 s65, s38, 7"); A("s_add_u32 s64, s64, s65"); A("s_add_u32 s64, s64, 2048")
    A("v_lshlrev_b32 v19, 15, v2"); A("v_lshl_add_u32 v19, v1, 4, v19"); A("v_add_u32 v19, s64, v19")
    A("s_cmp_ge_u32 s40, 2"); A(f"s_cselect_b32 s64, {OOB}, 0"); A("v_or_b32 v18, s64, v18"); A("v_or_b32 v19, s64, v19")
    ACC = [32, 48]; WF = [20, 224]

    def yloads():
        L = [lambda: A("s_mov_b32 s66, 0")]
        for c in range(8):
            L.append(lambda c=c: (vm.issue(f"buffer_load_dwordx4 {vr(YIN+4*c,4)}, v18, s[56:59], s66 offen", "y"), A("s_add_u32 s66, s66, 4096")))
        return L

    def ytrans():
        L = [lambda: (vm.need("y"), A("s_mov_b32 s75, 0x05040100"), A("s_mov_b32 s76, 0x07060302"), A("s_mov_b32 s66, 0"))]
        for c in range(8):
            for k in range(4):
                L.append(lambda c=c, k=k: A(f"v_perm_b32 v{YOUT+4*c+k}, v{YIN+4*(2*k+1)+(c>>1)}, v{YIN+4*(2*k)+(c>>1)}, s{75+(c&1)}"))
            L.append(lambda c=c: (vm.issue(f"buffer_store_dwordx4 {vr(YOUT+4*c,4)}, v19, s[52:55], s66 offen", "ys"), A("s_add_u32 s66, s66, 4096")))
        return L

    def wreads(i, kk, fs):
        base = 16384 * i + 2048 * kk; hi = base >= 65536
        return [(f"ds_read_b64_tr_b16 {vr(WF[fs]+4*nb+2*j,2)}, v{(16 if hi else 6)+nb} offset:{(base&65535)+1024*j}", ("w", fs, nb)) for nb in range(2) for j in range(2)]
    for i in range(8):
        vm.need(("c", i)); A("s_barrier")
        if i == 0: stamp(A, opt, 82)
        if i == 0 and opt.get("stamps"): A("s_waitcnt lgkmcnt(0)")
        fill = loads(i + 2) if i + 2 < 8 else []
        if i == 2: fill = fill + yloads()
        if i == 5: fill = fill + ytrans()
        for r, tg in wreads(i, 0, 0): lg.issue(r, tg)
        n = len(fill); done = 0
        for kk in range(8):
            fs = kk & 1
            if kk < 7:
                for r, tg in wreads(i, kk + 1, fs ^ 1): lg.issue(r, tg)
            for nb in range(2):
                lg.need(("w", fs, nb))
                A(f"{MF32} {vr(ACC[nb],16)}, {vr(WF[fs]+4*nb,4)}, {vr(OF+32*(i%3)+4*kk,4)}, " + ("0" if (i == 0 and kk == 0) else vr(ACC[nb], 16)))
                upto = (n * (2 * kk + nb + 1)) // 16
                while done < upto: fill[done](); done += 1
    stamp(A, opt, 84)
    ST = 131072
    A("s_lshl_b32 s64, s40, 12"); A(f"s_add_u32 s64, s64, {ST}")
    A("v_and_b32 v13, 31, v0"); A("v_lshl_add_u32 v14, v13, 7, s64"); A("v_and_b32 v13, 7, v13"); A("v_lshlrev_b32 v15, 1, v12"); A("v_xor_b32 v13, v13, v15")
    for nb in range(2):
        for i in range(8): A(f"v_cvt_pk_bf16_f32 v{64+8*nb+i}, v{ACC[nb]+2*i}, v{ACC[nb]+2*i+1}")
        for i in range(2):
            A(f"v_xor_b32 v15, {4*nb+i}, v13"); A("v_lshl_add_u32 v15, v15, 4, v14")
            lg.issue(f"ds_write_b128 v15, {vr(64+8*nb+4*i,4)}")
    A("v_xor_b32 v13, v1, v2"); A("v_lshlrev_b32 v13, 4, v13"); A("v_lshl_add_u32 v13, v1, 7, v13"); A("v_add_u32 v13, s64, v13")
    A("s_lshl_b32 s64, s39, 19"); A("s_lshl_b32 s65, s40, 17"); A("s_add_u32 s64, s64, s65"); A("s_lshl_b32 s65, s38, 7"); A("s_add_u32 s64, s64, s65")
    A("v_lshlrev_b32 v14, 12, v1"); A("v_lshl_add_u32 v14, v2, 4, v14")
    lg.drain()
    for k in range(4): lg.issue(f"ds_read_b128 {vr(80+4*k,4)}, v13 offset:{1024*k}", k)
    for k in range(4):
        lg.need(k)
        A(f"buffer_store_dwordx4 {vr(80+4*k,4)}, v14, s[52:55], s64 offen")
        if k < 3: A("s_add_u32 s64, s64, 32768")
    if opt.get("stamps"):
        A("s_waitcnt vmcnt(0)"); stamp(A, opt, 86); write_stamps(A, 0x10000)
    A("k2_end:"); A("s_endpgm")
    return p


HEADER = """; Hedgehog linear attention (QKV GEMM, feature maps, kv/z all-reduce, output GEMM) + S4 long convolution.
; Kernarg (128 bytes of pointers): x, wqkv, w_phi, wo, u, A_re, A_im, B_re, B_im, C_re, C_im, log_dt, Dskip, out, debug, ws
; k1: QKV GEMM on waves 0-3, tile loading + SSM kernel generation + convolution on waves 4-7; k2: output GEMM + y transposition""".split("\n")


def build(opt):
    return assemble_file([("k1_kernel", 256, 512, 163840, k1(opt), 256, None),
                          ("k2_kernel", 256, 256, 147456, k2(opt), 256, None)], header=HEADER)


if __name__ == "__main__":
    opt = {}
    for a in sys.argv[2:]: opt[a] = 1
    open(sys.argv[1], "w").write(build(opt))
```

```python
import sys
from asmgen import *

WS_UT = 0x0000000
WS_YT = 0x0400000
WS_O = 0x0800000
WS_KVP = 0x0C00000
WS_ZP = 0x0E00000
WS_DBG = 0x1000000
WS_SIZE = 0x10000000

STAGE = 40960
WOFF = 16384
NST = 16
SP = 3 * STAGE
TBL = 9216
WPHI_L = SP + 4 * TBL
CNT_L = SP + TBL - 16
KD_OFF = 4608
P_L = STAGE
PSZ = 8256
X1_L = 2 * STAGE
X2_L = X1_L + 4 * 4352
LOG2E = 0x3FB8AA3B
INV2PI = 0x3E22F983
OOB = 0x7F000000
SPIN = 0x100000


def vr(a, n=1):
    return f"v{a}" if n == 1 else f"v[{a}:{a+n-1}]"


PLAIN = False
def cmul(r, z, w):
    if PLAIN:
        return [f"v_mul_f32 v{r}, v{z}, v{w}\nv_mul_f32 v{r+1}, v{z+1}, v{w}",
                f"v_fma_f32 v{r}, -v{z+1}, v{w+1}, v{r}\nv_fmac_f32 v{r+1}, v{z}, v{w+1}"]
    return [f"v_pk_mul_f32 {vr(r,2)}, {vr(z,2)}, {vr(w,2)} op_sel_hi:[1,0]",
            f"v_pk_fma_f32 {vr(r,2)}, {vr(z,2)}, {vr(w,2)}, {vr(r,2)} op_sel:[1,1,0] op_sel_hi:[0,1,1] neg_lo:[1,0,0]"]


def srd(A, d, base, size, add=None):
    if add is None:
        A(f"s_mov_b32 s{d}, s{base}"); A(f"s_mov_b32 s{d+1}, s{base+1}")
    else:
        A(f"s_add_u32 s{d}, s{base}, {add}"); A(f"s_addc_u32 s{d+1}, s{base+1}, 0")
    A(f"s_mov_b32 s{d+2}, {size}"); A(f"s_mov_b32 s{d+3}, 0x20000")


def stamp(A, opt, slot):
    if opt.get("stamps"):
        A(f"s_memrealtime s[{slot}:{slot+1}]")


def softmax_pair(A0, P, En, T, o_pos, o_neg, sL, plain=False):
    m, nm, c2 = T, T + 2, T + 4
    def A(t):
        if not (plain and t.startswith("v_pk_")): return A0(t)
        import re
        mm = re.match(r"v_pk_(\w+)_f32 (.*)", t); op = mm.group(1)
        regs = re.findall(r"([vs])\[(\d+):\d+\]", mm.group(2)); neg = "neg_lo" in t
        hi = re.search(r"op_sel_hi:\[([\d,]+)\]", t); hi = [int(x) for x in hi.group(1).split(",")] if hi else [1, 1, 1]
        for h in range(2):
            o = [f"{regs[0][0]}{int(regs[0][1])+h}"] + [f"{k}{int(n)+(h if hi[i] else 0)}" for i, (k, n) in enumerate(regs[1:])]
            if neg: o[1] = "-" + o[1]
            A0(f"v_{op}_f32 " + ", ".join(o))
    A(f"v_max3_f32 v{m}, v{P}, v{P+1}, v{P+2}")
    A(f"v_max3_f32 v{nm}, -v{P}, -v{P+1}, -v{P+2}")
    for i in range(3, 15, 2):
        A(f"v_max3_f32 v{m}, v{m}, v{P+i}, v{P+i+1}")
        A(f"v_max3_f32 v{nm}, v{nm}, -v{P+i}, -v{P+i+1}")
    A(f"v_max_f32 v{m}, v{m}, v{P+15}")
    A(f"v_max_f32_e64 v{nm}, v{nm}, -v{P+15}")
    A(f"v_permlane32_swap_b32 v{m}, v{nm}")
    A(f"v_max_f32 v{m}, v{m}, v{nm}")
    A(f"v_mul_f32 v{m}, {hex(LOG2E | 0x80000000)}, v{m}")
    A(f"v_mov_b32 v{nm}, v{m}")
    A(f"v_permlane32_swap_b32 v{m}, v{nm}")
    for i in range(0, 16, 2):
        A(f"v_pk_fma_f32 {vr(En+i,2)}, {vr(P+i,2)}, s[{sL}:{sL+1}], {vr(nm,2)} op_sel_hi:[1,1,0] neg_lo:[1,0,0] neg_hi:[1,0,0]")
        A(f"v_pk_fma_f32 {vr(P+i,2)}, {vr(P+i,2)}, s[{sL}:{sL+1}], {vr(m,2)} op_sel_hi:[1,1,0]")
    for i in range(16):
        A(f"v_exp_f32 v{En+i}, v{En+i}")
        A(f"v_exp_f32 v{P+i}, v{P+i}")
    A(f"v_pk_add_f32 {vr(nm,2)}, {vr(En,2)}, {vr(En+2,2)}")
    A(f"v_pk_add_f32 {vr(m,2)}, {vr(P,2)}, {vr(P+2,2)}")
    for i in range(4, 16, 2):
        A(f"v_pk_add_f32 {vr(nm,2)}, {vr(nm,2)}, {vr(En+i,2)}")
        A(f"v_pk_add_f32 {vr(m,2)}, {vr(m,2)}, {vr(P+i,2)}")
    A(f"v_add_f32 v{nm}, v{nm}, v{nm+1}")
    A(f"v_add_f32 v{m}, v{m}, v{m+1}")
    A(f"v_permlane32_swap_b32 v{m}, v{nm}")
    A(f"v_add_f32 v{m}, v{m}, v{nm}")
    A(f"v_rcp_f32 v{m}, v{m}")
    A(f"v_mov_b32 v{nm}, v{m}")
    A(f"v_permlane32_swap_b32 v{m}, v{nm}")
    for i in range(0, 16, 2):
        A(f"v_pk_mul_f32 {vr(P+i,2)}, {vr(P+i,2)}, {vr(m,2)} op_sel_hi:[1,0]")
        A(f"v_pk_mul_f32 {vr(En+i,2)}, {vr(En+i,2)}, {vr(nm,2)} op_sel_hi:[1,0]")
    for i in range(8):
        A(f"v_cvt_pk_bf16_f32 v{o_pos+i}, v{P+2*i}, v{P+2*i+1}")
        A(f"v_cvt_pk_bf16_f32 v{o_neg+i}, v{En+2*i}, v{En+2*i+1}")


def lds_arrive_wait(A, lg, name, addr_v, one_v, tmp_v, target, stmp):
    lg.drain()
    A(f"ds_add_u32 v{addr_v}, v{one_v}")
    A(f"s_mov_b32 s79, {SPIN}")
    A(f"{name}:")
    A(f"ds_read_b32 v{tmp_v}, v{addr_v}")
    A("s_sub_u32 s79, s79, 1"); A(f"s_cbranch_scc1 {name}_x")
    A("s_waitcnt lgkmcnt(0)")
    A(f"v_readfirstlane_b32 s{stmp}, v{tmp_v}")
    A(f"s_cmp_lt_u32 s{stmp}, {target}")
    A(f"s_cbranch_scc1 {name}")
    A(f"{name}_x:")
    A("s_waitcnt lgkmcnt(0)")


MF32 = "v_mfma_f32_32x32x16_bf16"
MF16 = "v_mfma_f32_16x16x32_bf16"


def k1(opt):
    p = Prog(); A = p
    A("s_cmp_ge_u32 s2, 256"); A("s_cbranch_scc1 k1_end")
    A("s_load_dwordx16 s[4:19], s[0:1], 0")
    A("s_load_dwordx16 s[20:35], s[0:1], 64")
    stamp(A, opt, 80)
    A("s_and_b32 s36, s2, 7"); A("s_lshr_b32 s37, s2, 3")
    A("s_and_b32 s38, s36, 3"); A("s_lshl_b32 s38, s38, 2"); A("s_and_b32 s39, s37, 3"); A("s_add_u32 s38, s38, s39")
    A("s_lshr_b32 s39, s36, 2"); A("s_lshl_b32 s39, s39, 3"); A("s_lshr_b32 s41, s37, 2"); A("s_add_u32 s39, s39, s41")
    A("v_lshrrev_b32 v1, 6, v0"); A("v_and_b32 v0, 63, v0"); A("v_readfirstlane_b32 s40, v1")
    A("s_cmp_ge_u32 s40, 4"); A("s_cbranch_scc1 k1_s")
    k1_g(A, opt)
    A("k1_s:")
    k1_s(A, opt)
    A("k1_end:"); A("s_endpgm")
    return p


def k1_g(A, opt):
    lg = Cnt(A, "lgkmcnt"); vm = Cnt(A, "vmcnt")
    ACC = 16; F = [112, 132]; WP = 152; ID = 160
    RAW = 168; UIN = 224; UOUT = 112
    A("s_and_b32 s42, s40, 1"); A("s_lshr_b32 s43, s40, 1")
    A("s_lshl_b32 s47, s36, 5"); A("s_add_u32 s47, s47, s37"); A("s_lshl_b32 s47, s47, 2"); A("s_add_u32 s47, s47, s40")
    A("v_and_b32 v8, 31, v0"); A("s_lshl_b32 s60, s47, 8"); A("v_lshl_add_u32 v2, v8, 3, s60")
    A("s_lshl_b32 s60, s47, 1"); A("v_mov_b32 v3, s60")
    A("s_lshl_b32 s44, s38, 1"); A("s_add_u32 s44, s44, s42")
    A("s_lshl_b32 s45, s44, 1"); A("s_add_u32 s45, s45, s43"); A("s_lshl_b32 s45, s45, 10")
    A("v_lshl_add_u32 v4, v0, 4, s45")
    A("s_waitcnt lgkmcnt(0)")
    vm.issue("global_load_ushort v180, v3, s[26:27]", "par")
    for a in range(6): vm.issue(f"global_load_dwordx2 {vr(RAW+2*a,2)}, v2, s[{14+2*a}:{15+2*a}]", "par")
    vm.issue("global_load_dwordx4 v[12:15], v4, s[8:9]", "wphi")
    srd(A, 56, 34, WS_SIZE); srd(A, 64, 12, 0x400000)
    A("s_lshr_b32 s68, s37, 4"); A("s_lshl_b32 s69, s36, 1"); A("s_add_u32 s68, s68, s69")
    A("s_and_b32 s69, s37, 15")
    A("v_lshrrev_b32 v1, 3, v0"); A("v_and_b32 v2, 7, v0")
    A("s_lshl_b32 s70, s40, 3"); A("v_add_u32 v5, s70, v1")
    A("s_lshl_b32 s70, s69, 18"); A("s_lshl_b32 s71, s68, 7"); A("s_add_u32 s70, s70, s71")
    A("v_lshlrev_b32 v6, 14, v5"); A("v_lshl_add_u32 v6, v2, 4, v6"); A("v_add_u32 v6, s70, v6")
    A("s_cmp_ge_u32 s40, 2"); A(f"s_cselect_b32 s72, {OOB}, 0"); A("v_or_b32 v6, s72, v6")
    for r in range(8):
        if not r & 1: A(f"s_movk_i32 s70, {2048*r}")
        vm.issue(f"buffer_load_dwordx4 {vr(UIN+4*r,4)}, v6, s[64:67], s70 offen offset:{2048*(r&1)}", "uin")
    A("s_lshl_b32 s70, s68, 18"); A("s_lshl_b32 s71, s69, 8"); A("s_add_u32 s70, s70, s71"); A(f"s_add_u32 s70, s70, {WS_UT}")
    A("v_lshlrev_b32 v181, 15, v2"); A("v_lshl_add_u32 v181, v5, 4, v181"); A("v_add_u32 v181, s70, v181"); A("v_or_b32 v181, s72, v181")
    A("s_lshl_b32 s61, s38, 2"); A("s_add_u32 s61, s61, s40"); A("s_lshl_b32 s61, s61, 4"); A("s_add_u32 s61, s61, s39")
    A("s_lshl_b32 s76, s61, 11"); A(f"s_add_u32 s76, s76, {WS_KVP}"); A("s_lshl_b32 s77, s61, 7"); A(f"s_add_u32 s77, s77, {WS_ZP}")
    for i in range(4): A(f"v_mov_b32 v{112+i}, -1")
    A("v_lshlrev_b32 v5, 4, v0"); A("v_lshlrev_b32 v6, 2, v8")
    for i in range(2): vm.issue(f"buffer_store_dwordx4 v[112:115], v5, s[56:59], s76 offen offset:{1024*i} sc1", "clr")
    vm.issue("buffer_store_dword v112, v6, s[56:59], s77 offen sc1", "clr")
    A("s_lshl_b32 s46, s43, 13")
    A("v_lshrrev_b32 v9, 5, v0")
    A("v_bfe_u32 v10, v8, 1, 3"); A("v_xor_b32 v10, v10, v9"); A("v_lshl_add_u32 v11, v8, 7, s46")
    for t in range(4):
        A(f"v_xor_b32 v7, {2*t}, v10"); A(f"v_lshl_add_u32 v{2+t}, v7, 4, v11")
    A("v_bfe_u32 v10, v0, 2, 2")
    A("v_lshrrev_b32 v11, 1, v10"); A("v_xor_b32 v11, s42, v11")
    A("v_lshl_add_u32 v7, v9, 3, v10"); A("v_lshlrev_b32 v7, 7, v7"); A("v_lshl_add_u32 v7, v11, 6, v7")
    A("v_bfe_u32 v11, v0, 4, 1"); A("v_lshlrev_b32 v1, 5, v11"); A("v_and_b32 v11, 3, v0"); A("v_lshl_add_u32 v1, v11, 3, v1")
    A("v_add_u32 v7, v7, v1"); A(f"v_add_u32 v6, {WOFF}, v7")
    A("v_lshl_add_u32 v10, v9, 2, v10"); A("v_lshl_add_u32 v1, v10, 6, v1")
    A("s_lshl_b32 s60, s42, 11"); A(f"s_add_u32 s60, s60, {WPHI_L}"); A("v_add_u32 v1, s60, v1")
    DT, XH, HB, LB, RB = 182, 183, 184, 185, 186
    AR, AI, W1, W256, SS, W2, W4, W8, E4, CC, GA, GB, GC, LA, LC, TC, T0 = 188, 189, 190, 192, 194, 196, 198, 200, 202, 204, 206, 208, 210, 212, 214, 216, 220
    FR = 112; KD = 128; HF = "s[72:73]"
    A(f"s_mul_i32 s74, s40, {TBL}"); A(f"s_add_u32 s74, s74, {SP}")
    A(f"v_cmp_eq_u32 {HF}, 1, v9")
    A(f"v_cvt_f32_u32 v{XH}, v9"); A(f"v_mul_f32 v{XH}, 0x43000000, v{XH}")
    A(f"v_lshl_add_u32 v10, v8, 2, s74")
    A(f"v_mul_u32_u24 v11, {4*144}, v9"); A(f"v_add_u32 v{HB}, v10, v11"); A(f"v_add_u32 v{HB}, {32*144}, v{HB}")
    A(f"v_mul_u32_u24 v11, {16*144}, v9"); A(f"v_add_u32 v{LB}, v10, v11")
    A(f"v_mul_u32_u24 v11, 144, v8"); A(f"v_lshl_add_u32 v11, v9, 4, v11"); A(f"v_add_u32 v{RB}, s74, v11")
    for r in range(16): A(f"v_mov_b32 v{KD+r}, 0")
    A("v_lshlrev_b32 v10, 2, v9"); A("v_sub_u32 v10, v8, v10")
    A("v_mov_b32 v11, 0x3f80"); A("v_mov_b32 v7, 0x3f800000")
    for t in range(2):
        for wd in range(4):
            c0 = 16 * t + 8 * (wd >> 1) + 2 * (wd & 1); d = ID + 4 * t + wd
            A(f"v_cmp_eq_u32 vcc, {c0}, v10"); A(f"v_cmp_eq_u32 s[48:49], {c0+1}, v10")
            A(f"v_cndmask_b32 v{d}, 0, v11, vcc"); A(f"v_cndmask_b32 v{d}, v{d}, v7, s[48:49]")
    for r in range(96): A(f"v_mov_b32 v{ACC+r}, 0")
    A(f"v_mov_b32 v10, {CNT_L}")
    lg.issue("ds_write_b128 v10, v[16:19]")
    vm.need("par")
    stamp(A, opt, 98)
    t0, t1 = T0, T0 + 1
    A("v_lshlrev_b32 v180, 16, v180"); A(f"s_mov_b32 s75, {hex(LOG2E)}")
    A(f"v_mul_f32 v{t0}, s75, v180"); A(f"v_fma_f32 v{t1}, v180, s75, -v{t0}"); A(f"v_fmac_f32 v{t1}, 0x32a57060, v180")
    A(f"v_exp_f32 v{t0}, v{t0}"); A(f"v_mul_f32 v{t1}, 0x3f317218, v{t1}"); A(f"v_fma_f32 v{t0}, v{t0}, v{t1}, v{t0}")
    A(f"v_cvt_pk_bf16_f32 v{DT}, v{t0}, v{t0}"); A(f"v_lshlrev_b32 v{DT}, 16, v{DT}")
    A("s_mov_b32 s50, 0")
    A("k1_kgen:")

    def anchor(dst, x):
        R = []
        if x is None: m, ph = f"v{AR}", f"v{AI}"
        else:
            R += [f"v_mul_f32 v{t0}, {x}, v{AR}", f"v_mul_f32 v{t1}, {x}, v{AI}"]; m, ph = f"v{t0}", f"v{t1}"
        R += [f"v_exp_f32 v{t0}, {m}", f"v_fract_f32 v{t1}, {ph}", f"v_cos_f32 v{dst}, v{t1}", f"v_sin_f32 v{dst+1}, v{t1}",
              f"v_pk_mul_f32 {vr(dst,2)}, {vr(dst,2)}, {vr(t0,2)} op_sel_hi:[1,0]"]
        return R
    for d, a in [(AR, 0), (AI, 1), (GA, 2), (GA + 1, 3), (GB, 4), (GB + 1, 5)]:
        A(f"v_lshlrev_b32 v{d}, 16, v{RAW+2*a}")
    A(f"v_pk_mul_f32 {vr(AR,2)}, {vr(AR,2)}, {vr(DT,2)} op_sel_hi:[1,0]")
    c = cmul(CC, GA, GB); A(c[0])
    A(f"v_mul_f32 v{AR}, {hex(LOG2E)}, v{AR}"); A(c[1]); A(f"v_mul_f32 v{AI}, {hex(INV2PI)}, v{AI}")
    sh = []
    for a in range(6): sh += [f"v_alignbit_b32 v{RAW+2*a}, v{RAW+2*a+1}, v{RAW+2*a}, 16", f"v_lshrrev_b32 v{RAW+2*a+1}, 16, v{RAW+2*a+1}"]
    a1 = anchor(W1, None)
    for x in a1[:4] + sh[:2] + a1[4:] + sh[2:3]: A(x)
    c = cmul(W2, W1, W1); a256 = anchor(W256, "0x43800000")
    for x in [c[0], a256[0], c[1]] + a256[1:3]: A(x)
    c = cmul(W4, W2, W2)
    for x in [c[0], a256[3], c[1]] + a256[4:6] + sh[3:5] + a256[6:]: A(x)
    c = cmul(W8, W4, W4); aS = anchor(SS, f"v{XH}")
    for x in [c[0], aS[0], c[1]] + aS[1:6] + sh[5:7] + aS[6:]: A(x)
    A(f"v_pk_mul_f32 {vr(CC,2)}, {vr(CC,2)}, {vr(DT,2)} op_sel_hi:[1,0]")
    A(f"v_cndmask_b32 v{E4}, 1.0, v{W4}, {HF}"); A(f"v_cndmask_b32 v{E4+1}, 0, v{W4+1}, {HF}")
    for x in sh[7:]: A(x)
    hi = [(GA, CC, E4, 0), (GB, GA, W1, 1), (GC, GB, W1, 2), (GB, GC, W1, 3),
          (GB, GA, W256, 8), (GA, GB, W2, 9), (GC, GA, W2, 10),
          (GA, GB, W256, 16), (GC, GA, W4, 17), (GB, GA, W256, 18), (GC, GB, W4, 19),
          (GA, W256, E4, None), (GC, GB, GA, 24), (GA, GC, W256, 25), (GB, GA, W256, 26), (GC, GB, W256, 27)]
    lo = [(None, SS, None, 0)]; cur = SS
    for i in range(1, 16):
        nxt = LA if cur != LA else LC
        lo.append((nxt, cur, W8, i)); cur = nxt
    for k in range(16):
        hd, hz, hw, hr = hi[k]; ld, lz, lw_, lr = lo[k]
        ch = cmul(hd, hz, hw); cl_ = cmul(ld, lz, lw_) if ld is not None else None
        lv = ld if ld is not None else lz; tc = TC + 2 * (k & 1)
        A(ch[0])
        if cl_: A(cl_[0])
        else: A(f"v_cvt_pk_bf16_f32 v{tc+1}, v{lv}, v{lv+1}")
        A(ch[1])
        if cl_: A(cl_[1])
        else: lg.issue(f"ds_write_b32 v{LB}, v{tc+1} offset:{lr*144}")
        if hr is not None: A(f"v_cvt_pk_bf16_f32 v{tc}, v{hd}, -v{hd+1}")
        elif cl_: A("s_nop 0")
        if cl_: A(f"v_cvt_pk_bf16_f32 v{tc+1}, v{lv}, v{lv+1}")
        if hr is not None: lg.issue(f"ds_write_b32 v{HB}, v{tc} offset:{hr*144}")
        if cl_: lg.issue(f"ds_write_b32 v{LB}, v{tc+1} offset:{lr*144}")
    lg.drain()
    for half in range(2):
        for s in range(2):
            lg.issue(f"ds_read_b128 {vr(FR+8*s,4)}, v{RB} offset:{32*144+32*(2*half+s)}", ("f", s))
            lg.issue(f"ds_read_b128 {vr(FR+8*s+4,4)}, v{RB} offset:{32*(2*half+s)}", ("f", s))
        if half == 1: A("s_add_u32 s50, s50, 1"); A("s_cmp_lt_u32 s50, 4")
        for s in range(2):
            lg.need(("f", s))
            A(f"{MF32} {vr(KD,16)}, {vr(FR+8*s,4)}, {vr(FR+8*s+4,4)}, {vr(KD,16)}")
    A("s_cbranch_scc1 k1_kgen")
    stamp(A, opt, 100)
    A("s_lshl_b32 s60, s42, 1"); A("s_add_u32 s60, s60, s43"); A("s_lshl_b32 s60, s60, 10"); A(f"s_add_u32 s60, s60, {WPHI_L}")
    A("v_lshl_add_u32 v10, v0, 4, s60")
    vm.need("uin")
    lg.issue("ds_write_b128 v10, v[12:15]")
    A("s_mov_b32 s75, 0x05040100"); A("s_mov_b32 s76, 0x07060302"); A("s_mov_b32 s77, 0")
    A("v_lshl_add_u32 v10, v0, 4, s74")
    UO = [168, 172, 176, 188, 192, 196, 200, 204]
    for c in range(8):
        for k in range(4): A(f"v_perm_b32 v{UO[c]+k}, v{UIN+4*(2*k+1)+(c>>1)}, v{UIN+4*(2*k)+(c>>1)}, s{75+(c&1)}")
        vm.issue(f"buffer_store_dwordx4 {vr(UO[c],4)}, v181, s[56:59], s77 offen sc1", "uout")
        if c < 7: A("s_add_u32 s77, s77, 4096")
        if c >= 4: lg.issue(f"ds_write_b128 v10, {vr(KD+4*(c-4),4)} offset:{KD_OFF+1024*(c-4)}")
    lg.drain()

    def reads(fs, t):
        b = F[fs]
        def W(g): return [(f"ds_read_b64_tr_b16 {vr(b+8+4*g+2*j,2)}, v6 offset:{t*6144+g*2048+j*512}", ("w", fs, g)) for j in range(2)]
        return [(f"ds_read_b128 {vr(b,4)}, v{2+t}", ("x", fs, 0))] + W(0) + [(f"ds_read_b128 {vr(b+4,4)}, v{2+t} offset:4096", ("x", fs, 1))] + W(1) + W(2)

    def mfs(fs):
        R = []
        for i in range(6):
            b = F[fs]; g = i // 2; blk = i % 2; a = ACC + 16 * i
            X = vr(b + 4 * blk, 4); Wf = vr(b + 8 + 4 * g, 4)
            R.append((f"{MF32} {vr(a,16)}, " + (f"{Wf}, {X}" if g < 2 else f"{X}, {Wf}") + f", {vr(a,16)}", {("x", fs, blk), ("w", fs, g)}))
        return R
    if opt.get("prioloop"): A("s_setprio 1")
    A("s_mov_b32 s50, 0"); A("s_mov_b32 s51, 0")
    A("s_barrier")
    stamp(A, opt, 82)
    if opt.get("stamps"): A("s_memtime s[96:97]"); A("s_waitcnt lgkmcnt(0)")
    for t in range(2):
        for j in range(2):
            lg.issue(f"ds_read_b64_tr_b16 {vr(WP+4*t+2*j,2)}, v1 offset:{(16*t+8*j)*64}", "wp")
    for r, tg in reads(0, 0): lg.issue(r, tg)
    lg.need("wp")
    q0 = list(lg.q)
    slots = [2, 2, 2, 2, 0, 0]
    A("k1_gloop:")
    for t in range(4):
        fs = t & 1; R = reads(fs ^ 1, (t + 1) & 3); M = mfs(fs); ri = 0; last = (t == 3)
        if last:
            A("s_add_u32 s51, s51, 1"); A(f"s_mov_b32 s52, {STAGE}"); A("s_cmp_eq_u32 s51, 3")
            A(f"s_cselect_b32 s52, {(-2*STAGE)&0xffffffff}, s52"); A("s_cselect_b32 s51, 0, s51")
        for i, (m, tags) in enumerate(M):
            lg.need(tags); A(m)
            if last and i == 0:
                A("v_add_u32 v2, s52, v2"); A("v_add_u32 v6, s52, v6")
            for k in range(slots[i]): lg.issue(*R[ri]); ri += 1
            if last and i == 4:
                for a in (3, 4, 5): A(f"v_add_u32 v{a}, s52, v{a}")
                A("s_add_u32 s50, s50, 1"); A(f"s_cmp_lt_u32 s50, {NST}")
            if t == 2 and i == 4:
                A("s_cmp_lg_u32 s50, 3"); A("s_cbranch_scc1 k1_nodrain"); A("s_waitcnt vmcnt(0)"); A("k1_nodrain:")
            if t == 2 and i == 5: lg.drain(); A("s_barrier")
    vm.q = []
    assert lg.q == q0
    A("s_cbranch_scc1 k1_gloop")
    lg.drain()
    stamp(A, opt, 84)
    if opt.get("stamps"): A("s_memtime s[94:95]"); A("s_waitcnt lgkmcnt(0)"); A("s_sub_u32 s94, s94, s96")
    if opt.get("prio"): A("s_setprio 3")
    Q, K, V = ACC, ACC + 32, ACC + 64
    KB = 112; VB = 128; PK = [168, 184]; PQ = [200, 216]; EN = 232; T = 248; ONES = 8
    A(f"s_mov_b32 s54, {hex(LOG2E)}"); A(f"s_mov_b32 s55, {hex(LOG2E)}")
    for b in range(2):
        for i in range(8): A(f"v_cvt_pk_bf16_f32 v{KB+8*b+i}, v{K+16*b+2*i}, v{K+16*b+2*i+1}")
        for t in range(2): A(f"{MF32} {vr(PK[b],16)}, {vr(WP+4*t,4)}, {vr(KB+8*b+4*t,4)}, " + ("0" if t == 0 else vr(PK[b], 16)))
    QB = K
    for b in range(2):
        for i in range(8): A(f"v_cvt_pk_bf16_f32 v{VB+8*b+i}, v{V+16*b+2*i}, v{V+16*b+2*i+1}")
    for b in range(2):
        for i in range(8): A(f"v_cvt_pk_bf16_f32 v{QB+8*b+i}, v{Q+16*b+2*i}, v{Q+16*b+2*i+1}")
    for i in range(4): A(f"v_mov_b32 v{ONES+i}, 0x3f803f80")
    for b in range(2):
        for t in range(2): A(f"{MF32} {vr(PQ[b],16)}, {vr(WP+4*t,4)}, {vr(QB+8*b+4*t,4)}, " + ("0" if t == 0 else vr(PQ[b], 16)))
    KV = [16, 32]; Z = [80, 96]; PH = 64; TR = [144, 0]
    TD = [PK[0], EN]
    TA = 112
    for b in range(2):
        softmax_pair(A, PK[b], EN, T, PH, PH + 8, 54, opt.get('plainsm'))
        TD = [PK[b], EN]
        for s in range(2):
            for t in range(2): A(f"{MF32} {vr(TD[s],16)}, {vr(PH+8*s+4*t,4)}, {vr(ID+4*t,4)}, " + ("0" if t == 0 else vr(TD[s], 16)))
        for s in range(2):
            for i in range(8): A(f"v_cvt_pk_bf16_f32 v{TA+8*s+i}, v{TD[s]+2*i}, v{TD[s]+2*i+1}")
            for t in range(2):
                c = "0" if (b == 0 and t == 0) else None
                A(f"{MF32} {vr(KV[s],16)}, {vr(TA+8*s+4*t,4)}, {vr(VB+8*b+4*t,4)}, " + (c or vr(KV[s], 16)))
                A(f"{MF32} {vr(Z[s],16)}, {vr(ONES,4)}, {vr(TA+8*s+4*t,4)}, " + (c or vr(Z[s], 16)))
    A(f"s_mul_i32 s60, s40, 4352"); A(f"s_add_u32 s60, s60, {X1_L}")
    A("s_xor_b32 s61, s40, 2"); A(f"s_mul_i32 s61, s61, 4352"); A(f"s_add_u32 s61, s61, {X1_L}")
    A("v_lshl_add_u32 v12, v0, 4, s60"); A("v_lshl_add_u32 v13, v0, 4, s61")
    A("v_lshl_add_u32 v14, v0, 2, s60"); A("v_lshl_add_u32 v15, v0, 2, s61")
    A("s_lshl_b32 s62, s42, 2"); A(f"s_add_u32 s62, s62, {CNT_L}"); A("v_mov_b32 v2, s62"); A("v_mov_b32 v3, 1")
    A("s_cmp_eq_u32 s43, 0"); A("s_cbranch_scc1 k1_keep0")
    for i in range(16): A(f"v_swap_b32 v{KV[0]+i}, v{KV[1]+i}")
    A(f"v_swap_b32 v{Z[0]}, v{Z[1]}")
    A("k1_keep0:")
    for i in range(4): lg.issue(f"ds_write_b128 v12, {vr(KV[1]+4*i,4)} offset:{1024*i}")
    lg.issue(f"ds_write_b32 v14, v{Z[1]} offset:4096")
    A("s_mov_b64 s[64:65], exec"); A("s_mov_b64 exec, 1")
    lds_arrive_wait(A, lg, "k1_spinA", 2, 3, 4, 2, 63)
    A("s_mov_b64 exec, s[64:65]")
    for i in range(4): lg.issue(f"ds_read_b128 {vr(KV[1]+4*i,4)}, v13 offset:{1024*i}", i)
    lg.issue(f"ds_read_b32 v{Z[1]}, v15 offset:4096", "z")
    A("s_lshl_b32 s66, s38, 2"); A("s_add_u32 s66, s66, s40"); A("s_lshl_b32 s66, s66, 4")
    A("s_add_u32 s67, s66, s39")
    A("s_lshl_b32 s68, s67, 11"); A(f"s_add_u32 s68, s68, {WS_KVP}"); A("s_lshl_b32 s69, s67, 7"); A(f"s_add_u32 s69, s69, {WS_ZP}")
    A("v_lshlrev_b32 v5, 4, v0"); A("v_lshlrev_b32 v6, 2, v0"); A("v_cmp_gt_u32 vcc, 32, v0"); A(f"v_mov_b32 v7, {OOB}"); A("v_cndmask_b32 v7, v7, v6, vcc")
    A("v_mov_b32 v9, -2")
    for i in range(4):
        lg.need(i)
        for j in range(2): A(f"v_pk_add_f32 {vr(KV[0]+4*i+2*j,2)}, {vr(KV[0]+4*i+2*j,2)}, {vr(KV[1]+4*i+2*j,2)}")
        for j in range(2): A(f"v_cvt_pk_bf16_f32 v{TA+2*i+j}, v{KV[0]+4*i+2*j}, v{KV[0]+4*i+2*j+1}")
        for j in range(2): A(f"v_min_u32 v{TA+2*i+j}, v{TA+2*i+j}, v9")
        if i & 1: vm.issue(f"buffer_store_dwordx4 {vr(TA+4*(i>>1),4)}, v5, s[56:59], s68 offen offset:{1024*(i>>1)} sc1")
    lg.need("z")
    A(f"v_add_f32 v{Z[0]}, v{Z[0]}, v{Z[1]}"); A(f"v_min_u32 v{Z[0]}, v{Z[0]}, v9")
    vm.issue(f"buffer_store_dword v{Z[0]}, v7, s[56:59], s69 offen sc1")
    stamp(A, opt, 86)
    PHQ = [16, 32]
    def release():
        A(f"v_mov_b32 v2, {CNT_L+8}"); A("s_mov_b64 exec, 1"); A("ds_add_u32 v2, v3"); A("s_mov_b64 exec, s[64:65]")
    rel = opt.get("rel", 0)
    if rel == 0: release()
    softmax_pair(A, PQ[0], EN, T, PHQ[0], PHQ[0] + 8, 54, opt.get('plainsm'))
    if rel == 1: release()
    softmax_pair(A, PQ[1], EN, T, PHQ[1], PHQ[1] + 8, 54, opt.get('plainsm'))
    if rel == 2: release()
    stamp(A, opt, 88)
    LD = 112
    ZL = 48
    IDC = 64
    for i in range(8): A(f"v_mov_b32 v{IDC+i}, v{ID+i}")
    A("s_lshl_b32 s69, s66, 7"); A(f"s_add_u32 s69, s69, {WS_ZP}")
    A("v_and_b32 v2, 15, v0"); A("v_lshlrev_b32 v2, 7, v2")
    A(f"s_mov_b32 s79, {SPIN}")
    A("s_branch k1_poll")
    A("k1_again:")
    A(f"s_sleep {opt.get('sleep', 4)}")
    A("k1_poll:")
    A("buffer_load_dword v4, v2, s[56:59], s69 offen offset:124 sc1")
    A("s_sub_u32 s79, s79, 1"); A("s_cbranch_scc1 k1_polled")
    A("s_waitcnt vmcnt(0)")
    A("v_cmp_eq_u32 vcc, -1, v4"); A("s_cbranch_vccnz k1_again")
    A("k1_polled:")
    A("s_waitcnt vmcnt(0)"); vm.q = []
    stamp(A, opt, 90)
    A("s_lshl_b32 s68, s66, 11"); A(f"s_add_u32 s68, s68, {WS_KVP}")
    for i in range(8): vm.issue(f"buffer_load_dword v{ZL+i}, v6, s[56:59], s69 offen offset:{256*i} sc1", ("z", i))
    for r in range(16):
        for i in range(2):
            vm.issue(f"buffer_load_dwordx4 {vr(LD+8*r+4*i,4)}, v5, s[56:59], s68 offen offset:{(r&1)*2048+1024*i} sc1", (r, i))
        if r & 1 and r < 15: A("s_add_u32 s68, s68, 4096")
    RED = 80
    vm.need(("z", 7))
    A(f"v_max3_u32 v4, v{ZL}, v{ZL+1}, v{ZL+2}"); A(f"v_max3_u32 v4, v4, v{ZL+3}, v{ZL+4}"); A(f"v_max3_u32 v4, v4, v{ZL+5}, v{ZL+6}"); A(f"v_max_u32 v4, v4, v{ZL+7}")
    for i in range(0, 8, 2): A(f"v_add_f32 v{ZL+i}, v{ZL+i}, v{ZL+i+1}")
    A(f"v_add_f32 v{ZL}, v{ZL}, v{ZL+2}"); A(f"v_add_f32 v{ZL+4}, v{ZL+4}, v{ZL+6}"); A(f"v_add_f32 v{ZL}, v{ZL}, v{ZL+4}")
    A(f"v_mov_b32 v{ZL+1}, v{ZL}"); A(f"v_permlane32_swap_b32 v{ZL}, v{ZL+1}"); A(f"v_add_f32 v{ZL}, v{ZL}, v{ZL+1}")
    A(f"v_cvt_pk_bf16_f32 v{ZL}, v{ZL}, v{ZL}")
    A("v_and_b32 v8, 31, v0"); A("v_lshrrev_b32 v9, 4, v8"); A("v_lshlrev_b32 v9, 5, v9")
    A("v_bfe_u32 v10, v8, 2, 1"); A("v_lshl_add_u32 v9, v10, 4, v9"); A("v_bfe_u32 v10, v8, 3, 1"); A("v_lshl_add_u32 v9, v10, 3, v9")
    A("v_and_b32 v10, 3, v8"); A("v_lshl_add_u32 v9, v10, 1, v9")
    A("s_lshl_b32 s70, s42, 7"); A(f"s_add_u32 s70, s70, {X2_L+8192}"); A("s_lshl_b32 s71, s43, 6"); A("s_add_u32 s71, s71, s70"); A("v_add_u32 v9, s71, v9")
    lg.issue(f"ds_write_b16 v9, v{ZL}")
    A("v_lshrrev_b32 v10, 5, v0"); A("v_lshl_add_u32 v10, v10, 4, s70")
    A("s_lshl_b32 s71, s40, 11"); A(f"s_add_u32 s71, s71, {X2_L}"); A("v_add_u32 v12, s71, v5")
    A("s_lshl_b32 s71, s42, 11"); A(f"s_add_u32 s71, s71, {X2_L}"); A("v_add_u32 v13, s71, v5")
    for r in range(16):
        for i in range(2):
            vm.need((r, i))
            A(f"{MF32} {vr(RED,16)}, {vr(IDC+4*i,4)}, {vr(LD+8*r+4*i,4)}, " + ("0" if (r == 0 and i == 0) else vr(RED, 16)))
            x = LD + 8 * r + 4 * i
            A(f"v_max3_u32 v4, v4, v{x}, v{x+1}"); A(f"v_max3_u32 v4, v4, v{x+2}, v{x+3}")
    A("v_cmp_eq_u32 vcc, -1, v4"); A("s_cmp_eq_u32 s79, -1"); A("s_cbranch_scc1 k1_gathered"); A("s_cbranch_vccnz k1_again")
    A("k1_gathered:")
    A("s_lshl_b32 s62, s42, 2"); A(f"s_add_u32 s62, s62, {CNT_L}"); A("v_mov_b32 v2, s62")
    KF = 112
    for i in range(8): A(f"v_cvt_pk_bf16_f32 v{KF+i}, v{RED+2*i}, v{RED+2*i+1}")
    for i in range(2): lg.issue(f"ds_write_b128 v12, {vr(KF+4*i,4)} offset:{1024*i}")
    A("s_mov_b64 exec, 1")
    lds_arrive_wait(A, lg, "k1_spinC", 2, 3, 4, 4, 63)
    A("s_mov_b64 exec, s[64:65]")
    for s in range(2):
        for t in range(2):
            lg.issue(f"ds_read_b128 {vr(KF+8*s+4*t,4)}, v13 offset:{4096*s+1024*t}", ("k", s, t))
            lg.issue(f"ds_read_b128 {vr(KF+16+8*s+4*t,4)}, v10 offset:{64*s+32*t}", ("z", s, t))
    NUM = [144, 160]; DEN = [176, 192]
    for s in range(2):
        for t in range(2):
            for b in range(2):
                c = "0" if (s == 0 and t == 0) else None
                lg.need(("z", s, t))
                A(f"{MF32} {vr(DEN[b],16)}, {vr(KF+16+8*s+4*t,4)}, {vr(PHQ[b]+8*s+4*t,4)}, " + (c or vr(DEN[b], 16)))
    for s in range(2):
        for t in range(2):
            for b in range(2):
                c = "0" if (s == 0 and t == 0) else None
                A(f"{MF32} {vr(NUM[b],16)}, {vr(KF+8*s+4*t,4)}, {vr(PHQ[b]+8*s+4*t,4)}, " + (c or vr(NUM[b], 16)))
    A("s_lshl_b32 s70, s39, 1"); A("s_add_u32 s70, s70, s43"); A("s_lshl_b32 s70, s70, 17"); A("s_lshl_b32 s71, s44, 11")
    A("s_add_u32 s70, s70, s71"); A(f"s_add_u32 s70, s70, {WS_O}"); A("s_add_u32 s71, s70, 65536")
    for b in range(2):
        A(f"v_add_f32 v{DEN[b]}, 0x358637bd, v{DEN[b]}"); A(f"v_rcp_f32 v{DEN[b]}, v{DEN[b]}")
    for b in range(2):
        for i in range(0, 16, 2): A(f"v_pk_mul_f32 {vr(NUM[b]+i,2)}, {vr(NUM[b]+i,2)}, {vr(DEN[b],2)} op_sel_hi:[1,0]")
        for i in range(8): A(f"v_cvt_pk_bf16_f32 v{208+8*b+i}, v{NUM[b]+2*i}, v{NUM[b]+2*i+1}")
        for t in range(2): A(f"buffer_store_dwordx4 {vr(208+8*b+4*t,4)}, v5, s[56:59], s{70+b} offen offset:{1024*t}")
    if opt.get("stamps"):
        A("s_waitcnt vmcnt(0)"); stamp(A, opt, 92); write_stamps(A, 0)
    A("s_endpgm")


def write_stamps(A, base):
    A("s_waitcnt lgkmcnt(0)")
    A("s_lshl_b32 s70, s2, 3"); A("s_add_u32 s70, s70, s40"); A("s_lshl_b32 s70, s70, 6"); A(f"s_add_u32 s70, s70, {WS_DBG+base}")
    for i in range(11): A(f"v_mov_b32 v{16+i}, s{80+2*i}")
    A("v_mov_b32 v12, s70")
    for i in range(3): A(f"global_store_dwordx4 v12, {vr(16+4*i,4)}, s[34:35] offset:{16*i}")


def k1_s(A, opt):
    lg = Cnt(A, "lgkmcnt"); vm = Cnt(A, "vmcnt")
    A("s_sub_u32 s41, s40, 4")
    if opt.get("sprio"): A("s_setprio 2")
    A("v_lshrrev_b32 v1, 3, v0"); A("s_lshl_b32 s42, s41, 5"); A("v_add_u32 v5, s42, v1"); A("v_lshlrev_b32 v5, 11, v5")
    A("v_and_b32 v2, 7, v0"); A("v_lshrrev_b32 v3, 4, v0")
    for i in range(4):
        A(f"v_xor_b32 v4, {4*(i&1)}, v3"); A("v_xor_b32 v4, v4, v2"); A("v_lshl_add_u32 v4, v4, 4, v5")
        A(f"v_add_u32 v{8+i}, {16384*i-1024*i}, v4")
    A("s_lshl_b32 s42, s41, 4"); A("v_add_u32 v5, s42, v1"); A("v_mul_u32_u24 v5, 6144, v5"); A("s_lshl_b32 s42, s38, 7"); A("v_add_u32 v5, s42, v5")
    A("v_bfe_u32 v3, v0, 4, 1"); A("v_lshlrev_b32 v4, 2, v3"); A("v_xor_b32 v4, v4, v2"); A("v_lshl_add_u32 v4, v4, 4, v5")
    for half in range(2):
        for g in range(3):
            idx = 2 * g + half
            A(f"v_add_u32 v{12+idx}, {half*8*6144+g*2048-1024*(idx&3)}, v4")
    A("s_lshl_b32 s43, s41, 12"); A("s_mul_i32 s44, s41, 6144"); A(f"s_add_u32 s44, s44, {WOFF}")
    A("s_lshr_b32 s45, s37, 2"); A("s_add_u32 s45, s45, s37")
    A("s_lshl_b32 s46, s39, 18")
    A("s_lshl_b32 s47, s36, 5"); A("s_add_u32 s47, s47, s37"); A("s_lshl_b32 s47, s47, 2"); A("s_add_u32 s47, s47, s41")
    A("v_and_b32 v18, 31, v0")
    A("s_lshl_b32 s60, s47, 1"); A("v_mov_b32 v20, s60")
    A("s_waitcnt lgkmcnt(0)")
    srd(A, 48, 4, 0x40000, add="s46"); srd(A, 52, 6, 0x600000)

    def issue(i, fill):
        buf = (i % 3) * STAGE
        A(f"s_add_u32 s60, s45, {i&3}"); A("s_and_b32 s60, s60, 3")
        if i & 12: A(f"s_or_b32 s60, s60, {i&12}")
        A("s_lshl_b32 s61, s60, 7"); A(f"s_mul_i32 s62, s60, {64*6144}")
        L = []
        for k in range(4): L.append((f"s_add_u32 m0, s43, {buf}" if k == 0 else None, f"buffer_load_dwordx4 v{8+k}, s[48:51], s61 offen offset:{1024*k} lds"))
        for k in range(4): L.append((f"s_add_u32 m0, s44, {buf}" if k == 0 else None, f"buffer_load_dwordx4 v{12+k}, s[52:55], s62 offen offset:{1024*k} lds"))
        for k in range(2): L.append((f"s_add_u32 m0, s44, {buf+4096}" if k == 0 else None, f"buffer_load_dwordx4 v{16+k}, s[52:55], s62 offen offset:{1024*k} lds"))
        n = len(fill); done = 0
        for k, (m, l) in enumerate(L):
            if m: A(m)
            vm.issue(l, ("st", i))
            upto = (n * (k + 1)) // len(L)
            if opt.get("fillafter"): upto = n if k == len(L) - 1 else 0
            while done < upto: fill[done](); done += 1

    issue(0, [])
    vm.issue("global_load_ushort v22, v20, s[28:29]", "par")
    issue(1, [])
    issue(2, [])
    UIN = 128; KD = 108; HF = "s[72:73]"
    srd(A, 56, 34, WS_SIZE); srd(A, 64, 32, 256)
    A("s_lshr_b32 s68, s37, 4"); A("s_lshl_b32 s69, s36, 1"); A("s_add_u32 s68, s68, s69")
    A(f"s_mul_i32 s74, s41, {TBL}"); A(f"s_add_u32 s74, s74, {SP}")
    A("v_lshrrev_b32 v3, 5, v0"); A(f"v_cmp_eq_u32 {HF}, 1, v3")
    A("v_lshlrev_b32 v5, 4, v0"); A("v_add_u32 v21, s74, v5")
    A("s_lshl_b32 s75, s68, 2"); A("s_add_u32 s75, s75, 64"); A("s_cmp_eq_u32 s41, 0"); A(f"s_cselect_b32 s76, s75, {OOB}")
    A("v_mov_b32 v7, s76"); A(f"v_mov_b32 v23, {OOB}"); A("v_cmp_eq_u32 vcc, 0, v0"); A("v_mov_b32 v41, 1")
    A("v_cndmask_b32 v7, v23, v7, vcc")
    A("v_and_b32 v6, 15, v0"); A("v_lshl_add_u32 v6, v6, 2, 64")
    vm.need(("st", 0)); A("s_barrier")
    stamp(A, opt, 82)
    for i in range(4): lg.issue(f"ds_read_b128 {vr(KD+4*i,4)}, v21 offset:{KD_OFF+1024*i}")
    for i in range(13):
        vm.need(("st", i + 1)); A("s_barrier")
        if i == 0: vm.need("par"); A("v_lshlrev_b32 v22, 16, v22"); A("v_cndmask_b32 v22, 0, v22, vcc")
        if i == 4: vm.issue("buffer_atomic_add v41, v7, s[64:67], 0 offen sc1", "sig")
        issue(i + 3, [])
        if i == 10: vm.issue("buffer_load_dword v41, v6, s[64:67], 0 offen sc1", "flag")
    vm.need("flag")
    A(f"s_mov_b32 s79, {SPIN}")
    A("k1_upoll:")
    A("v_cmp_gt_u32 vcc, 16, v41"); A("s_cbranch_vccz k1_uready")
    A("s_sub_u32 s79, s79, 1"); A("s_cbranch_scc1 k1_uready")
    A("s_sleep 8"); A("buffer_load_dword v41, v6, s[64:67], 0 offen sc1"); A("s_waitcnt vmcnt(0)")
    A("s_branch k1_upoll")
    A("k1_uready:")
    A("s_lshl_b32 s75, s47, 12"); A(f"s_add_u32 s76, s75, {WS_UT}")
    for i in range(4): vm.issue(f"buffer_load_dwordx4 {vr(UIN+4*i,4)}, v5, s[56:59], s76 offen offset:{1024*i} sc1", "u")
    lg.drain()
    A("s_lshl_b32 s77, s2, 2"); A("s_add_u32 s77, s77, s41"); A("s_lshl_b32 s77, s77, 11"); A("v_and_b32 v4, 15, v0"); A("v_lshl_add_u32 v4, v4, 7, s77")
    vm.issue("global_load_dword v23, v4, s[10:11]", "wo")
    vm.need(("st", 14)); A("s_barrier")
    d = lambda a, b: KD + 4 * a + b
    A(f"s_mul_i32 s77, s41, {PSZ}"); A(f"s_add_u32 s77, s77, {P_L}")
    A("v_add_u32 v4, 31, v0"); A("v_subrev_u32 v2, 32, v0"); A(f"v_cndmask_b32 v4, v4, v2, {HF}"); A("v_lshlrev_b32 v4, 2, v4")
    lg.issue(f"ds_bpermute_b32 v44, v4, v{d(0,3)}", "prev")
    A(f"v_add_f32 v{d(0,0)}, v{d(0,0)}, v22")
    A(f"v_readlane_b32 s78, v{d(0,3)}, 63")
    A("v_lshl_add_u32 v2, v18, 5, s77"); A("v_lshl_add_u32 v4, v3, 4, v2")
    A("v_lshl_add_u32 v2, v3, 10, v2")
    A("v_and_b32 v1, 15, v0"); A("v_lshl_add_u32 v1, v1, 2, s77"); A("v_mov_b32 v45, 0")
    lg.issue("ds_write_b32 v1, v45")
    A("v_cmp_eq_u32 vcc, 0, v0"); A("v_and_b32 v1, 1, v0"); A("v_cmp_eq_u32 s[70:71], 1, v1")
    A("v_mov_b32 v46, s78"); A(f"v_cndmask_b32 v46, v{d(1,0)}, v46, vcc")
    q = 48
    A(f"v_cvt_pk_bf16_f32 v{q}, v{d(1,0)}, v46"); A(f"v_cvt_pk_bf16_f32 v{q+1}, v{d(1,0)}, v{d(1,0)}")
    A(f"v_cvt_pk_bf16_f32 v{q+2}, v{d(1,1)}, v{d(1,0)}"); A(f"v_cvt_pk_bf16_f32 v{q+3}, v{d(1,2)}, v{d(1,1)}")
    lg.issue(f"ds_write_b128 v4, {vr(q,4)} offset:{(16+256)*4}")
    for k in range(2):
        a, b = d(2, 2 * k), d(2, 2 * k + 1); q = 52 + 4 * k
        A(f"v_cvt_pk_bf16_f32 v{q}, v{a}, v{a}"); A(f"v_cvt_pk_bf16_f32 v{q+3}, v{b}, v{a}"); A(f"v_cvt_pk_bf16_f32 v47, v{b}, v{b}")
        A(f"v_mov_b32 v{q+1}, v{q}"); A(f"v_cndmask_b32 v{q+2}, v{q}, v{q+3}, {HF}"); A(f"v_cndmask_b32 v{q+3}, v{q+3}, v47, {HF}")
        lg.issue(f"ds_write_b128 v4, {vr(q,4)} offset:{(16+512+256*k)*4}")
    for k in range(2):
        a, b = d(3, 2 * k), d(3, 2 * k + 1); q = 60 + 8 * k
        A(f"v_permlane32_swap_b32 v{a}, v{b}")
        A(f"v_cvt_pk_bf16_f32 v{q}, v{a}, v{a}"); A(f"v_cvt_pk_bf16_f32 v47, v{b}, v{a}"); A(f"v_cvt_pk_bf16_f32 v{q+6}, v{b}, v{b}")
        for j in range(1, 4): A(f"v_mov_b32 v{q+j}, v{q}")
        A(f"v_mov_b32 v{q+7}, v{q+6}")
        A(f"v_cndmask_b32 v{q+4}, v{q}, v47, s[70:71]"); A(f"v_cndmask_b32 v{q+5}, v47, v{q+6}, s[70:71]")
        lg.issue(f"ds_write_b128 v2, {vr(q,4)} offset:{(16+1024+512*k)*4}")
        lg.issue(f"ds_write_b128 v2, {vr(q+4,4)} offset:{(16+1024+512*k)*4+16}")
    lg.need("prev")
    A("v_cndmask_b32 v44, v44, v45, vcc")
    q = 76
    A(f"v_cvt_pk_bf16_f32 v{q}, v{d(0,0)}, v44")
    for j in range(1, 4): A(f"v_cvt_pk_bf16_f32 v{q+j}, v{d(0,j)}, v{d(0,j-1)}")
    lg.issue(f"ds_write_b128 v4, {vr(q,4)} offset:64")
    vm.need(("st", 15)); A("s_barrier")
    A("v_min_u32 v1, 29, v0"); A("v_lshl_add_u32 v1, v1, 4, s74"); A("v_add_u32 v5, s74, v5")
    for j in range(4): A(f"v_mov_b32 v{80+j}, 0")
    lg.issue("ds_write_b128 v1, v[80:83]")
    AB = 8
    BB = 16
    A("v_and_b32 v1, 15, v0"); A("v_lshrrev_b32 v2, 4, v0")
    A("v_lshlrev_b32 v4, 3, v2"); A("v_sub_u32 v4, v1, v4"); A("v_add_u32 v4, 26, v4"); A(f"v_lshl_add_u32 v{AB}, v4, 2, s77")
    for k in range(1, 8): A(f"v_add_u32 v{AB+k}, {1024*k}, v{AB}")
    A(f"v_lshlrev_b32 v4, 5, v1"); A("v_lshl_add_u32 v4, v2, 4, v4"); A(f"v_add_u32 v{BB}, s74, v4")
    vm.need("u")
    for i in range(4): lg.issue(f"ds_write_b128 v5, {vr(UIN+4*i,4)} offset:{480+1024*i}")
    A("s_barrier")
    lg.drain()
    A(f"v_mov_b32 v4, {CNT_L+8}"); A(f"s_mov_b32 s79, {SPIN}")
    A("k1_hold:")
    A("s_sleep 1"); A("ds_read_b32 v5, v4"); A("s_sub_u32 s79, s79, 1"); A("s_cbranch_scc1 k1_go")
    A("s_waitcnt lgkmcnt(0)"); A("v_readfirstlane_b32 s78, v5"); A("s_cmp_lt_u32 s78, 4"); A("s_cbranch_scc1 k1_hold")
    A("k1_go:")
    A("s_waitcnt lgkmcnt(0)")
    stamp(A, opt, 84)
    if opt.get("stamps"): A("s_waitcnt lgkmcnt(0)")
    Y = 24; FA = [56, 120]; FB = [88, 152]

    def creads(s0):
        fs = s0 & 1; R = []
        for k in range(8):
            a = FA[fs] + 4 * k; b = FB[fs] + 4 * k
            R.append((f"ds_read_b128 {vr(b,4)}, v{BB} offset:{448-64*s0+512*k}", ("b", fs, k)))
            R.append((f"ds_read2_b32 {vr(a,2)}, v{AB+k} offset0:{32*s0+6} offset1:{32*s0+4}", ("a", fs, k)))
            R.append((f"ds_read2_b32 {vr(a+2,2)}, v{AB+k} offset0:{32*s0+2} offset1:{32*s0}", ("a", fs, k)))
        return R
    for r, tg in creads(0): lg.issue(r, tg)
    for s0 in range(8):
        fs = s0 & 1; R = creads(s0 + 1) if s0 < 7 else []; ri = 0
        order = [(s1, nu) for m in range(8) for (s1, nu) in ([(m, x) for x in range(m + 1)] + [(x, m) for x in range(m)]) if s1 + nu < 8]
        for k, (s1, nu) in enumerate(order):
            n = s1 + nu
            lg.need({("a", fs, s1), ("b", fs, nu)})
            first = (s0 == 0 and first_use(order, k))
            A(f"{MF16} {vr(Y+4*n,4)}, {vr(FA[fs]+4*s1,4)}, {vr(FB[fs]+4*nu,4)}, " + ("0" if first else vr(Y + 4 * n, 4)))
            if k >= 8 and ri < len(R): lg.issue(*R[ri]); ri += 1
        while ri < len(R): lg.issue(*R[ri]); ri += 1
    stamp(A, opt, 86)
    A("v_and_b32 v4, 1, v2"); A("v_lshlrev_b32 v4, 9, v4"); A("v_lshl_add_u32 v4, v1, 5, v4"); A("v_lshrrev_b32 v2, 1, v2"); A("v_lshl_add_u32 v4, v2, 4, v4")
    A(f"s_add_u32 s76, s75, {WS_YT}")
    for k in range(4):
        q = 56 + 4 * k
        for j in range(2):
            A(f"v_cvt_pk_bf16_f32 v{q+2*j}, v{Y+8*k+4*j}, v{Y+8*k+4*j+1}"); A(f"v_cvt_pk_bf16_f32 v{q+2*j+1}, v{Y+8*k+4*j+2}, v{Y+8*k+4*j+3}")
    for k in range(4):
        q = 56 + 4 * k
        A(f"v_permlane16_swap_b32 v{q}, v{q+2}"); A(f"v_permlane16_swap_b32 v{q+1}, v{q+3}")
        A(f"buffer_store_dwordx4 {vr(q,4)}, v4, s[56:59], s76 offen offset:{1024*k}")
    if opt.get("stamps"):
        A("s_waitcnt vmcnt(0)"); stamp(A, opt, 88); write_stamps(A, 0)


def first_use(order, k):
    n = sum(order[k])
    return all(sum(o) != n for o in order[:k])


def k2(opt):
    p = Prog(); A = p
    lg = Cnt(A, "lgkmcnt"); vm = Cnt(A, "vmcnt")
    A("s_cmp_ge_u32 s2, 256"); A("s_cbranch_scc1 k2_end")
    A("s_load_dwordx2 s[10:11], s[0:1], 24")
    A("s_load_dwordx8 s[28:35], s[0:1], 96")
    stamp(A, opt, 80)
    A("s_and_b32 s36, s2, 7"); A("s_lshr_b32 s37, s2, 3")
    A("s_lshr_b32 s39, s36, 1"); A("s_lshl_b32 s39, s39, 2"); A("s_lshr_b32 s41, s37, 3"); A("s_add_u32 s39, s39, s41")
    A("s_and_b32 s38, s36, 1"); A("s_lshl_b32 s38, s38, 3"); A("s_and_b32 s42, s37, 7"); A("s_add_u32 s38, s38, s42")
    A("s_add_u32 s45, s41, s42")
    A("v_lshrrev_b32 v1, 6, v0"); A("v_and_b32 v0, 63, v0"); A("v_readfirstlane_b32 s40, v1")
    A("v_lshrrev_b32 v1, 3, v0"); A("v_and_b32 v2, 7, v0"); A("v_bfe_u32 v3, v0, 4, 1"); A("v_lshlrev_b32 v3, 2, v3"); A("v_xor_b32 v3, v3, v2")
    A("s_lshl_b32 s43, s40, 5"); A("v_add_u32 v4, s43, v1"); A("v_lshlrev_b32 v4, 11, v4"); A("v_lshl_add_u32 v4, v3, 4, v4")
    A("s_lshl_b32 s43, s38, 7"); A("v_add_u32 v4, s43, v4")
    for k in range(4): A(f"v_add_u32 v{8+k}, {16384*k-1024*k}, v4")
    A("v_lshlrev_b32 v5, 4, v0")
    A("s_lshl_b32 s43, s39, 2"); A("s_add_u32 s43, s43, s40"); A("s_lshl_b32 s43, s43, 16"); A(f"s_add_u32 s43, s43, {WS_O}")
    A("s_lshl_b32 s44, s40, 12")
    A("s_waitcnt lgkmcnt(0)")
    srd(A, 48, 10, 0x200000); srd(A, 56, 34, WS_SIZE)
    OF = 64

    def chunk_id(i):
        A(f"s_add_u32 s60, s45, {i&3}"); A("s_and_b32 s60, s60, 3")
        if i & 4: A("s_or_b32 s60, s60, 4")

    def loads(i):
        L = []
        def head():
            chunk_id(i)
            A("s_lshl_b32 s61, s60, 18"); A("s_lshl_b32 s62, s60, 13"); A("s_add_u32 s62, s62, s43"); A("s_add_u32 s63, s62, 4096")
            A(f"s_add_u32 m0, s44, {16384*i}")
        L.append(head)
        for k in range(4): L.append(lambda k=k: vm.issue(f"buffer_load_dwordx4 v{8+k}, s[48:51], s61 offen offset:{1024*k} lds", ("c", i)))
        for k in range(8): L.append(lambda k=k: vm.issue(f"buffer_load_dwordx4 {vr(OF+32*(i%3)+4*k,4)}, v5, s[56:59], s{62+(k>>2)} offen offset:{1024*(k&3)}", ("c", i)))
        return L
    for f in loads(0) + loads(1): f()
    A("v_lshrrev_b32 v12, 5, v0"); A("v_bfe_u32 v13, v0, 2, 2"); A("v_lshl_add_u32 v14, v12, 2, v13"); A("v_lshlrev_b32 v14, 7, v14")
    A("v_and_b32 v15, 1, v0"); A("v_lshl_add_u32 v14, v15, 5, v14"); A("v_bfe_u32 v15, v0, 4, 1"); A("v_lshl_add_u32 v14, v15, 4, v14")
    A("v_bfe_u32 v15, v0, 1, 1"); A("v_lshl_add_u32 v14, v15, 3, v14")
    A("v_lshrrev_b32 v13, 1, v13"); A("v_lshl_add_u32 v6, v13, 6, v14"); A("v_xor_b32 v7, 64, v6")
    A("v_add_u32 v16, 65536, v6"); A("v_add_u32 v17, 65536, v7")
    YIN = 160; YOUT = 192
    srd(A, 52, 30, 0x800000)
    A("s_lshl_b32 s64, s38, 18"); A("s_lshl_b32 s65, s39, 8"); A("s_add_u32 s64, s64, s65"); A("s_lshl_b32 s65, s40, 7"); A("s_add_u32 s64, s64, s65"); A(f"s_add_u32 s64, s64, {WS_YT}")
    A("v_lshlrev_b32 v18, 15, v1"); A("v_lshl_add_u32 v18, v2, 4, v18"); A("v_add_u32 v18, s64, v18")
    A("s_lshl_b32 s64, s39, 19"); A("s_lshl_b32 s65, s40, 18"); A("s_add_u32 s64, s64, s65"); A("s_lshl_b32 s65, s38, 7"); A("s_add_u32 s64, s64, s65"); A("s_add_u32 s64, s64, 2048")
    A("v_lshlrev_b32 v19, 15, v2"); A("v_lshl_add_u32 v19, v1, 4, v19"); A("v_add_u32 v19, s64, v19")
    A("s_cmp_ge_u32 s40, 2"); A(f"s_cselect_b32 s64, {OOB}, 0"); A("v_or_b32 v18, s64, v18"); A("v_or_b32 v19, s64, v19")
    ACC = [32, 48]; WF = [20, 224]

    def yloads():
        L = [lambda: A("s_mov_b32 s66, 0")]
        for c in range(8):
            L.append(lambda c=c: (vm.issue(f"buffer_load_dwordx4 {vr(YIN+4*c,4)}, v18, s[56:59], s66 offen", "y"), A("s_add_u32 s66, s66, 4096")))
        return L

    def ytrans():
        L = [lambda: (vm.need("y"), A("s_mov_b32 s75, 0x05040100"), A("s_mov_b32 s76, 0x07060302"), A("s_mov_b32 s66, 0"))]
        for c in range(8):
            for k in range(4):
                L.append(lambda c=c, k=k: A(f"v_perm_b32 v{YOUT+4*c+k}, v{YIN+4*(2*k+1)+(c>>1)}, v{YIN+4*(2*k)+(c>>1)}, s{75+(c&1)}"))
            L.append(lambda c=c: (vm.issue(f"buffer_store_dwordx4 {vr(YOUT+4*c,4)}, v19, s[52:55], s66 offen", "ys"), A("s_add_u32 s66, s66, 4096")))
        return L

    def wreads(i, kk, fs):
        base = 16384 * i + 2048 * kk; hi = base >= 65536
        return [(f"ds_read_b64_tr_b16 {vr(WF[fs]+4*nb+2*j,2)}, v{(16 if hi else 6)+nb} offset:{(base&65535)+1024*j}", ("w", fs, nb)) for nb in range(2) for j in range(2)]
    for i in range(8):
        vm.need(("c", i)); A("s_barrier")
        if i == 0: stamp(A, opt, 82)
        if i == 0 and opt.get("stamps"): A("s_waitcnt lgkmcnt(0)")
        fill = loads(i + 2) if i + 2 < 8 else []
        if i == 2: fill = fill + yloads()
        if i == 5: fill = fill + ytrans()
        for r, tg in wreads(i, 0, 0): lg.issue(r, tg)
        n = len(fill); done = 0
        for kk in range(8):
            fs = kk & 1
            if kk < 7:
                for r, tg in wreads(i, kk + 1, fs ^ 1): lg.issue(r, tg)
            for nb in range(2):
                lg.need(("w", fs, nb))
                A(f"{MF32} {vr(ACC[nb],16)}, {vr(WF[fs]+4*nb,4)}, {vr(OF+32*(i%3)+4*kk,4)}, " + ("0" if (i == 0 and kk == 0) else vr(ACC[nb], 16)))
                upto = (n * (2 * kk + nb + 1)) // 16
                while done < upto: fill[done](); done += 1
    stamp(A, opt, 84)
    ST = 131072
    A("s_lshl_b32 s64, s40, 12"); A(f"s_add_u32 s64, s64, {ST}")
    A("v_and_b32 v13, 31, v0"); A("v_lshl_add_u32 v14, v13, 7, s64"); A("v_and_b32 v13, 7, v13"); A("v_lshlrev_b32 v15, 1, v12"); A("v_xor_b32 v13, v13, v15")
    for nb in range(2):
        for i in range(8): A(f"v_cvt_pk_bf16_f32 v{64+8*nb+i}, v{ACC[nb]+2*i}, v{ACC[nb]+2*i+1}")
        for i in range(2):
            A(f"v_xor_b32 v15, {4*nb+i}, v13"); A("v_lshl_add_u32 v15, v15, 4, v14")
            lg.issue(f"ds_write_b128 v15, {vr(64+8*nb+4*i,4)}")
    A("v_xor_b32 v13, v1, v2"); A("v_lshlrev_b32 v13, 4, v13"); A("v_lshl_add_u32 v13, v1, 7, v13"); A("v_add_u32 v13, s64, v13")
    A("s_lshl_b32 s64, s39, 19"); A("s_lshl_b32 s65, s40, 17"); A("s_add_u32 s64, s64, s65"); A("s_lshl_b32 s65, s38, 7"); A("s_add_u32 s64, s64, s65")
    A("v_lshlrev_b32 v14, 12, v1"); A("v_lshl_add_u32 v14, v2, 4, v14")
    lg.drain()
    for k in range(4): lg.issue(f"ds_read_b128 {vr(80+4*k,4)}, v13 offset:{1024*k}", k)
    for k in range(4):
        lg.need(k)
        A(f"buffer_store_dwordx4 {vr(80+4*k,4)}, v14, s[52:55], s64 offen")
        if k < 3: A("s_add_u32 s64, s64, 32768")
    if opt.get("stamps"):
        A("s_waitcnt vmcnt(0)"); stamp(A, opt, 86); write_stamps(A, 0x20000)
    A("k2_end:"); A("s_endpgm")
    return p


HEADER = """; Hedgehog linear attention (QKV GEMM, feature maps, kv/z all-reduce, output GEMM) + S4 long convolution.
; Kernarg (128 bytes of pointers): x, wqkv, w_phi, wo, u, A_re, A_im, B_re, B_im, C_re, C_im, log_dt, Dskip, out, debug, ws
; k1: QKV GEMM on waves 0-3, tile loading + SSM kernel generation + convolution on waves 4-7; k2: output GEMM + y transposition""".split("\n")


def build(opt):
    global PLAIN
    PLAIN = bool(opt.get("plainc"))
    return assemble_file([("k1_kernel", 256, 512, 163840, k1(opt), 256, None),
                          ("k2_kernel", 256, 256, 147456, k2(opt), 256, None)], header=HEADER)


if __name__ == "__main__":
    opt = {}
    for a in sys.argv[2:]:
        k, _, v = a.partition("="); opt[k] = int(v) if v else 1
    open(sys.argv[1], "w").write(build(opt))
```

```python
import re

TRANS = ("v_exp_f32","v_log_f32","v_rcp_f32","v_rsq_f32","v_sqrt_f32","v_sin_f32","v_cos_f32","v_rcp_iflag_f32")
REG_RE = re.compile(r"^(-|abs\()?\|?([vas])(\d+|\[(\d+):(\d+)\])\|?\)?$")

def regs_of(op):
    op = op.strip()
    if op in ("vcc",): return {("s","vcc_lo"),("s","vcc_hi")}
    if op in ("vcc_lo","vcc_hi"): return {("s",op)}
    if op == "exec": return {("s","exec")}
    if op == "m0": return {("s","m0")}
    m = REG_RE.match(op)
    if not m: return set()
    k = m.group(2)
    if m.group(4) is not None: return {(k,i) for i in range(int(m.group(4)), int(m.group(5))+1)}
    return {(k,int(m.group(3)))}

class Ins:
    __slots__=("text","mn","ops","defs","uses","cls","passes","srcc","dpp","label","target","nops","ab")
    def __init__(self, text):
        self.text = text; self.label=None; self.target=None; self.nops=0
        t = text.split(";")[0].strip()
        self.defs=set(); self.uses=set(); self.cls="other"; self.passes=0; self.srcc=set(); self.dpp=False; self.ab=set()
        if t.endswith(":"):
            self.label=t[:-1]; self.cls="label"; self.mn=""; self.ops=[]; return
        if not t or t.startswith("."):
            self.cls="dir"; self.mn=""; self.ops=[]; return
        p = t.split(None,1); mn=p[0]; self.mn=mn
        rest = p[1] if len(p)>1 else ""
        ops=[o.strip() for o in re.split(r",(?![^\[]*\])", rest)] if rest else []
        mods=""
        if ops:
            last=ops[-1].split(None,1)
            if len(last)>1 and not last[0].endswith("("):
                ops[-1]=last[0]; mods=last[1]
        self.ops=ops
        R=lambda i: regs_of(ops[i]) if i<len(ops) else set()
        allr=lambda a: set().union(*[R(i) for i in range(a,len(ops))]) if len(ops)>a else set()
        if mn.startswith("v_mfma"):
            self.cls="mfma"; self.defs=R(0); self.ab=R(1)|R(2); self.srcc=R(3); self.uses=self.ab|self.srcc
            if "32x32x16" in mn: self.passes=8
            elif "16x16x32" in mn: self.passes=4
            else: raise ValueError("mfma passes? "+mn)
        elif mn.startswith("v_"):
            self.cls="valu"
            base=mn.replace("_e32","").replace("_e64","").replace("_dpp","").replace("_sdwa","")
            if base in TRANS: self.cls="trans"
            self.dpp = ("dpp" in mn) or any(x in mods for x in ("row_shr","row_shl","row_ror","quad_perm","wave_sh","wave_ro","row_bcast","row_mirror","row_half_mirror","row_newbcast"))
            if base.startswith("v_permlane") and "swap" in base:
                self.defs=R(0)|R(1); self.uses=R(0)|R(1); self.cls="permlane"
            elif base.startswith("v_cmp"):
                self.defs=R(0); self.uses=allr(1)
            elif base in ("v_add_co_u32","v_sub_co_u32","v_subrev_co_u32","v_addc_co_u32","v_subb_co_u32"):
                self.defs=R(0)|R(1); self.uses=allr(2)
            elif base in ("v_readfirstlane_b32","v_readlane_b32"):
                self.defs=R(0); self.uses=allr(1); self.cls="readlane"
            elif base=="v_nop": pass
            else:
                self.defs=R(0); self.uses=allr(1)
                if base in ("v_fmac_f32","v_pk_fmac_f16","v_dot2c_f32_bf16","v_fmac_f16","v_writelane_b32") or self.dpp or "sdwa" in mn: self.uses|=R(0)
                if base=="v_cndmask_b32" and len(ops)==3: self.uses|=regs_of("vcc")
        elif mn.startswith("ds_"):
            self.cls="ds"
            if mn.startswith("ds_read") or "rtn" in mn or "permute" in mn or "swizzle" in mn:
                self.defs=R(0); self.uses=allr(1)
            else: self.uses=allr(0)
        elif mn.startswith("buffer_") or mn.startswith("global_"):
            self.cls="vmem"
            islds = (" lds" in " "+mods) or "_lds_" in mn
            if islds: self.uses=allr(0)|{("s","m0")}; self.cls="vmemlds"
            elif "load" in mn: self.defs=R(0); self.uses=allr(1)
            elif "atomic" in mn:
                if "sc0" in mods:
                    if mn.startswith("global_"): self.defs=R(0); self.uses=allr(1)
                    else: self.defs=R(0); self.uses=allr(0)
                else: self.uses=allr(0)
            elif "store" in mn:
                self.uses=allr(0)
                if "x4" in mn or "x3" in mn:
                    self.cls="vmemwide"; self.srcc = R(0) if mn.startswith("buffer_") else R(1)
            else: self.uses=allr(0)
        elif mn.startswith("s_"):
            self.cls="salu"
            if mn=="s_nop": self.nops=int(ops[0],0)+1
            elif mn.startswith("s_cbranch") or mn=="s_branch": self.target=ops[0]
            elif mn.startswith("s_cmp") or mn in ("s_waitcnt","s_barrier","s_endpgm","s_setprio","s_sleep"): self.uses=allr(0)
            else:
                self.defs=R(0); self.uses=allr(1)
                if "saveexec" in mn: self.defs|={("s","exec")}
        else: raise ValueError("unknown instr: "+text)

VAL=("valu","trans","permlane","readlane")
def need(p, c):
    n=0
    vd={r for r in p.defs if r[0] in "va"}; sd={r for r in p.defs if r[0]=="s"}
    if p.cls in VAL:
        if c.cls=="mfma" and vd & c.uses: n=max(n,2)
        if c.cls=="permlane" and vd & c.uses: n=max(n,2)
        if c.cls=="readlane" and vd & c.uses: n=max(n,1)
        if c.dpp and vd & c.uses: n=max(n,2)
        if p.cls=="trans" and c.cls in VAL and c.cls!="trans" and vd & c.uses: n=max(n,1)
        if p.cls=="trans" and c.cls in ("ds","vmem","vmemwide","vmemlds") and vd & c.uses: n=max(n,1)
        if sd:
            if c.cls in VAL+("mfma",) and sd & c.uses: n=max(n,4 if c.cls=="readlane" else 2)
            if c.cls in ("vmem","vmemlds","vmemwide") and sd & c.uses: n=max(n,5)
            if c.cls=="salu" and sd & c.uses: n=max(n,2)
        if ("sdwa" in p.mn or p.mn.startswith("v_pk_")) and c.cls in VAL and vd & (c.uses|c.defs): n=max(n,1)
    if p.cls=="mfma":
        P=p.passes
        if c.cls=="mfma":
            if p.defs & c.ab: n=max(n,P+4)
            if p.defs & c.srcc and not (p.defs==c.srcc and p.passes==c.passes): n=max(n,P+2)
            if p.defs & c.defs and not (p.defs==c.defs and p.passes==c.passes and c.srcc==c.defs): n=max(n,P+2)
        elif c.cls in VAL or c.cls in ("ds","vmem","vmemlds","vmemwide"):
            if p.defs & (c.uses|c.defs): n=max(n,P+4)
            if c.cls in VAL and p.srcc & c.defs: n=max(n,P-1)
            if c.cls in ("ds","vmem") and p.srcc & c.defs: n=max(n,P-1)
    if p.cls=="vmemwide":
        if p.srcc & c.defs: n=max(n,2)
    if p.cls=="salu" and ("s","m0") in p.defs and c.cls=="vmemlds": n=max(n,1)
    return n

class Prog:
    def __init__(self): self.ins=[]
    def __call__(self, text):
        for line in text.split("\n"):
            line=line.strip()
            if line: self.ins.append(Ins(line))
    def finish(self, verbose=False):
        ins=self.ins; total=0
        lab={x.label:i for i,x in enumerate(ins) if x.label}
        srcs={}
        for i,x in enumerate(ins):
            if x.target is not None: srcs.setdefault(lab[x.target],[]).append(i)
        def preds(i):
            r=[]
            if i>0 and not (ins[i-1].mn in ("s_branch","s_endpgm")): r.append(i-1)
            r+=srcs.get(i,[])
            return r
        pad={}
        for i,c in enumerate(ins):
            if c.cls in ("label","dir"): continue
            worst=0; why=None; stack=[(j,0) for j in preds(i)]; seen={}
            while stack:
                j,d=stack.pop()
                if d>=20 or seen.get(j,99)<=d: continue
                seen[j]=d; p=ins[j]
                if p.cls in ("label","dir"): nd=d
                else:
                    k=need(p,c)
                    if k-d>worst: worst=k-d; why=p.text
                    nd=d+(p.nops if p.nops else 1)+pad.get(j,0)
                for q in preds(j): stack.append((q,nd))
            if worst>0:
                if verbose: print(f"pad {worst} before [{c.text}] due to [{why}]")
                total+=worst; pad[i]=worst
        self.padded=total
        out=[]
        for i,x in enumerate(ins):
            w=pad.get(i,0)
            while w>0:
                k=min(w,16); out.append(f"    s_nop {k-1}"); w-=k
            out.append(("" if x.cls in ("label","dir") else "    ")+x.text)
        return out

class Cnt:
    def __init__(s,A,name): s.A=A; s.q=[]; s.name=name; s.max=15 if name=="lgkmcnt" else 63
    def issue(s,text,tag=None): s.A(text); s.q.append(tag)
    def need(s,tags):
        if not isinstance(tags,(set,list)): tags={tags}
        idx=[i for i,t in enumerate(s.q) if t in tags]
        if not idx: return
        n=min(len(s.q)-1-max(idx),s.max); s.A(f"s_waitcnt {s.name}({n})")
        s.q=s.q[len(s.q)-n:] if n>0 else []
    def drain(s):
        s.A(f"s_waitcnt {s.name}(0)"); s.q=[]

def kd(name, vgpr, sgpr=102, accum=None):
    if accum is None: accum=(vgpr+3)//4*4
    return [".p2align 6", f".amdhsa_kernel {name}", f"  .amdhsa_next_free_vgpr {vgpr}", f"  .amdhsa_next_free_sgpr {sgpr}",
            f"  .amdhsa_accum_offset {accum}", "  .amdhsa_group_segment_fixed_size 0", "  .amdhsa_kernarg_size 128",
            "  .amdhsa_user_sgpr_count 2", "  .amdhsa_user_sgpr_kernarg_segment_ptr 1", "  .amdhsa_system_sgpr_workgroup_id_x 1",
            "  .amdhsa_float_denorm_mode_32 3", ".end_amdhsa_kernel"]

import subprocess, tempfile, os
PROMO=("v_mov_b32","v_add_f32","v_mul_f32","v_max_f32","v_sub_f32","v_exp_f32","v_rcp_f32","v_sin_f32","v_cos_f32","v_fract_f32","v_fmac_f32",
       "v_add_u32","v_sub_u32","v_and_b32","v_or_b32","v_xor_b32","v_lshlrev_b32","v_lshrrev_b32","v_min_u32","v_max_u32","v_permlane32_swap_b32","v_permlane16_swap_b32","v_cvt_f32_u32")
def sizes_of(lines):
    d=tempfile.mkdtemp(); f=os.path.join(d,"a.s")
    open(f,"w").write('.amdgcn_target "amdgcn-amd-amdhsa--gfx950"\n.text\n'+"\n".join(lines)+"\n")
    subprocess.run(["clang","-x","assembler","-target","amdgcn-amd-amdhsa","-mcpu=gfx950","-c",f,"-o",f+".o"],check=True)
    out=subprocess.run(["llvm-objdump","-d","--mcpu=gfx950",f+".o"],capture_output=True,text=True).stdout
    return [4*len(l.split("//")[1].split(":")[1].split("<")[0].split()) for l in out.splitlines() if "//" in l and l.startswith("\t")]
def align_runs(lines, minrun=5):
    idx=[i for i,l in enumerate(lines) if l.startswith("    ")]
    sz=sizes_of(lines); assert len(sz)==len(idx),(len(sz),len(idx))
    out=list(lines); par=0; k=0; n=len(idx); fixed=0
    while k<n:
        if sz[k]==8 and par:
            r=k
            while r<n and sz[r]==8: r+=1
            if r-k>=minrun:
                prev=out[idx[k-1]].strip(); mn=prev.split()[0]
                if mn in PROMO and sz[k-1]==4: out[idx[k-1]]="    "+mn+"_e64"+prev[len(mn):]
                else: out[idx[k]]="    s_nop 0\n"+out[idx[k]]
                par=0; fixed+=1
            k=r; continue
        par^=(sz[k]//4)&1; k+=1
    return out

def assemble_file(kernels, header=(), align=False):
    L=list(header)
    for (n,g,b,lds,_,_,_) in kernels: L.append(f"; @launch kernel={n} grid=({g},1,1) block=({b},1,1) lds={lds}")
    L+=['.amdgcn_target "amdgcn-amd-amdhsa--gfx950"', ".text"]
    done=set()
    for (n,g,b,lds,p,vg,ac) in kernels:
        if n in done: continue
        done.add(n)
        L+=[f".globl {n}", ".p2align 8", f".type {n},@function", f"{n}:"]+(align_runs(p.finish()) if align else p.finish())
    L.append('.section .rodata,"a"'); done=set()
    for (n,g,b,lds,p,vg,ac) in kernels:
        if n in done: continue
        done.add(n); L+=kd(n,vg,accum=ac)
    return "\n".join(L)+"\n"
```

```python
import sys, re
from asmgen import *

KNAME = "concat_heads__linear_kernel_hedgehog__ssm_conv_s4__prompt_kernel"
WS_UT = 0x0000000
WS_YT = 0x0400000
WS_O = 0x0800000
WS_KVP = 0x0C00000
WS_ZP = 0x0E00000
WS_FK = 0x0E40000
WS_FO = 0x0E60000
WS_FU = 0x0E80000
WS_FY = 0x0EA0000
WS_EP = 0x0EC0000
WS_DBG = 0x1000000
WS_SIZE = 0x10000000

STAGE = 40960
WOFF = 16384
NST = 16
TBL = 9216
TB_L = 40960
X_L = 77824
U_L = 95232
WPHI_L = 122880
UT_L = 126976
KD_L = 143360
CNT_L = 77760
UNIT = [122880 + 8192 * i for i in range(5)] + [113664] + [8192 * i for i in range(5)] + [40960 + 8192 * i for i in range(4)] + [95232]
LOG2E = 0x3FB8AA3B
INV2PI = 0x3E22F983
OOB = 0x7F000000
SPIN = 0x100000
MF32 = "v_mfma_f32_32x32x16_bf16"
MF16 = "v_mfma_f32_16x16x32_bf16"


def vr(a, n=1):
    return f"v{a}" if n == 1 else f"v[{a}:{a+n-1}]"


def cmul(r, z, w, plain=False):
    if plain:
        return [f"v_mul_f32 v{r}, v{z}, v{w}\nv_mul_f32 v{r+1}, v{z+1}, v{w}",
                f"v_fma_f32 v{r}, -v{z+1}, v{w+1}, v{r}\nv_fmac_f32 v{r+1}, v{z}, v{w+1}"]
    return [f"v_pk_mul_f32 {vr(r,2)}, {vr(z,2)}, {vr(w,2)} op_sel_hi:[1,0]",
            f"v_pk_fma_f32 {vr(r,2)}, {vr(z,2)}, {vr(w,2)}, {vr(r,2)} op_sel:[1,1,0] op_sel_hi:[0,1,1] neg_lo:[1,0,0]"]


def unpk(t):
    if not t.startswith("v_pk_"): return [t]
    mm = re.match(r"v_pk_(\w+)_f32 (.*)", t); op = mm.group(1)
    regs = re.findall(r"([vs])\[(\d+):\d+\]", mm.group(2)); neg = "neg_lo" in t
    hi = re.search(r"op_sel_hi:\[([\d,]+)\]", t); hi = [int(x) for x in hi.group(1).split(",")] if hi else [1, 1, 1]
    R = []
    for h in range(2):
        o = [f"{regs[0][0]}{int(regs[0][1])+h}"] + [f"{k}{int(n)+(h if hi[i] else 0)}" for i, (k, n) in enumerate(regs[1:])]
        if neg: o[1] = "-" + o[1]
        R.append(f"v_{op}_f32 " + ", ".join(o))
    return R


def srd(A, d, base, size, add=None):
    if add is None:
        A(f"s_mov_b32 s{d}, s{base}"); A(f"s_mov_b32 s{d+1}, s{base+1}")
    else:
        A(f"s_add_u32 s{d}, s{base}, {add}"); A(f"s_addc_u32 s{d+1}, s{base+1}, 0")
    A(f"s_mov_b32 s{d+2}, {size}"); A(f"s_mov_b32 s{d+3}, 0x20000")


def stamp(A, opt, k, s=False):
    if opt.get("stamps") and not (s and opt.get("steps") and k >= 2):
        A("s_memrealtime s[96:97]"); A("s_waitcnt lgkmcnt(0)"); A(f"s_mov_b32 s{80+k}, s96")


def write_stamps(A):
    A("s_lshl_b32 s70, s2, 3"); A("s_add_u32 s70, s70, s40"); A("s_lshl_b32 s70, s70, 6"); A(f"s_add_u32 s70, s70, {WS_DBG}")
    for i in range(16): A(f"v_mov_b32 v{16+i}, s{80+i}")
    A("v_mov_b32 v32, s100"); A("v_mov_b32 v33, s101"); A("v_mov_b32 v12, s70")
    A("v_add_u32 v13, 0x40000, v12"); A("global_store_dwordx2 v13, v[32:33], s[34:35]")
    for i in range(4): A(f"global_store_dwordx4 v12, {vr(16+4*i,4)}, s[34:35] offset:{16*i}")


def softmax_parts(P, En, T, o0, o1, sL, plain):
    m, nm = T, T + 2
    R = []; A = R.append
    A(f"v_max3_f32 v{m}, v{P}, v{P+1}, v{P+2}")
    A(f"v_max3_f32 v{nm}, -v{P}, -v{P+1}, -v{P+2}")
    for i in range(3, 15, 2):
        A(f"v_max3_f32 v{m}, v{m}, v{P+i}, v{P+i+1}")
        A(f"v_max3_f32 v{nm}, v{nm}, -v{P+i}, -v{P+i+1}")
    A(f"v_max_f32 v{m}, v{m}, v{P+15}")
    A(f"v_max_f32_e64 v{nm}, v{nm}, -v{P+15}")
    A(f"v_permlane32_swap_b32 v{m}, v{nm}")
    A(f"v_max_f32 v{m}, v{m}, v{nm}")
    A(f"v_mul_f32 v{m}, {hex(LOG2E | 0x80000000)}, v{m}")
    A(f"v_mov_b32 v{nm}, v{m}")
    A(f"v_permlane32_swap_b32 v{m}, v{nm}")
    for i in range(0, 16, 2):
        A(f"v_pk_fma_f32 {vr(En+i,2)}, {vr(P+i,2)}, s[{sL}:{sL+1}], {vr(nm,2)} op_sel_hi:[1,1,0] neg_lo:[1,0,0] neg_hi:[1,0,0]")
        A(f"v_pk_fma_f32 {vr(P+i,2)}, {vr(P+i,2)}, s[{sL}:{sL+1}], {vr(m,2)} op_sel_hi:[1,1,0]")
    for i in range(16):
        A(f"v_exp_f32 v{En+i}, v{En+i}")
        A(f"v_exp_f32 v{P+i}, v{P+i}")
    A(f"v_pk_add_f32 {vr(nm,2)}, {vr(En,2)}, {vr(En+2,2)}")
    A(f"v_pk_add_f32 {vr(m,2)}, {vr(P,2)}, {vr(P+2,2)}")
    for i in range(4, 16, 2):
        A(f"v_pk_add_f32 {vr(nm,2)}, {vr(nm,2)}, {vr(En+i,2)}")
        A(f"v_pk_add_f32 {vr(m,2)}, {vr(m,2)}, {vr(P+i,2)}")
    A(f"v_add_f32 v{nm}, v{nm}, v{nm+1}")
    A(f"v_add_f32 v{m}, v{m}, v{m+1}")
    A(f"v_permlane32_swap_b32 v{m}, v{nm}")
    A(f"v_add_f32 v{m}, v{m}, v{nm}")
    A(f"v_rcp_f32 v{m}, v{m}")
    A(f"v_mov_b32 v{nm}, v{m}")
    A(f"v_permlane32_swap_b32 v{m}, v{nm}")
    stats = R; R = []; A = R.append
    for src, r, o in ((En, nm, o1), (P, m, o0)):
        for i in range(0, 16, 2): A(f"v_pk_mul_f32 {vr(src+i,2)}, {vr(src+i,2)}, {vr(r,2)} op_sel_hi:[1,0]")
        for i in range(8): A(f"v_cvt_pk_bf16_f32 v{o+i}, v{src+2*i}, v{src+2*i+1}")
    if plain:
        stats = [y for x in stats for y in unpk(x)]; R = [y for x in R for y in unpk(x)]
    return stats, R


def zipper(A, a, b):
    for i in range(max(len(a), len(b))):
        if i < len(a): A(a[i])
        if i < len(b): A(b[i])


def weave(A, main, extra, start=0):
    n = len(main) - start; done = 0
    for i, x in enumerate(main):
        A(x)
        if i >= start:
            upto = (len(extra) * (i - start + 1) + n - 1) // n
            while done < min(upto, len(extra)): A(extra[done]); done += 1


def lds_add(A, cnt):
    A(f"v_mov_b32 v1, {CNT_L+4*cnt}" if isinstance(cnt, int) else f"v_mov_b32 v1, {cnt}")
    A("v_mov_b32 v7, 1"); A("s_mov_b64 exec, 1"); A("ds_add_u32 v1, v7"); A("s_mov_b64 exec, -1")


def lds_wait(A, name, cnt, target, sleep=0):
    A(f"v_mov_b32 v1, {CNT_L+4*cnt}" if isinstance(cnt, int) else f"v_mov_b32 v1, {cnt}")
    A(f"s_mov_b32 s79, {SPIN}")
    A(f"{name}:")
    A("ds_read_b32 v7, v1")
    A("s_sub_u32 s79, s79, 1"); A(f"s_cbranch_scc1 {name}_x")
    A("s_waitcnt lgkmcnt(0)")
    A("v_readfirstlane_b32 s78, v7"); A(f"s_cmp_ge_u32 s78, {target}"); A(f"s_cbranch_scc1 {name}_x")
    if sleep: A(f"s_sleep {sleep}")
    A(f"s_branch {name}")
    A(f"{name}_x:")
    A("s_waitcnt lgkmcnt(0)")


def gpoll(A, name, load, reg, bad, sleep, cnt=None):
    A(f"s_mov_b32 s79, {SPIN}")
    A(f"s_branch {name}")
    A(f"{name}_again:")
    A(f"s_sleep {sleep}")
    A(f"{name}:")
    A(load)
    A("s_sub_u32 s79, s79, 1"); A(f"s_cbranch_scc1 {name}_x")
    A("s_waitcnt vmcnt(0)")
    A(bad); A(f"s_cbranch_vccnz {name}_again")
    A(f"{name}_x:")
    A("s_waitcnt vmcnt(0)")
    if cnt: A(f"s_sub_u32 s{cnt}, {SPIN}, s79")


def epoch(A):
    A(f"s_add_u32 s0, s34, {WS_EP}"); A("s_addc_u32 s1, s35, 0"); A("s_load_dword s53, s[0:1], 0")


def signal(A, vm, soff, vaddr16, vtmp):
    for i in range(4): A(f"v_mov_b32 v{vtmp+i}, s53")
    A("s_mov_b64 exec, 0xff")
    vm.issue(f"buffer_store_dwordx4 {vr(vtmp,4)}, v{vaddr16}, s[56:59], {soff} offen sc1", "sig")
    A("s_mov_b64 exec, -1")


def kernel(opt):
    p = Prog(); A = p
    A("s_cmp_ge_u32 s2, 256"); A("s_cbranch_scc1 k_end")
    A("s_load_dwordx16 s[4:19], s[0:1], 0")
    A("s_load_dwordx16 s[20:35], s[0:1], 64")
    if opt.get("stamps"): A("s_memrealtime s[96:97]")
    A("s_and_b32 s36, s2, 7"); A("s_lshr_b32 s37, s2, 3")
    A("s_and_b32 s38, s36, 3"); A("s_lshl_b32 s38, s38, 2"); A("s_and_b32 s39, s37, 3"); A("s_add_u32 s38, s38, s39")
    A("s_lshr_b32 s39, s36, 2"); A("s_lshl_b32 s39, s39, 3"); A("s_lshr_b32 s41, s37, 2"); A("s_add_u32 s39, s39, s41")
    A("v_lshrrev_b32 v1, 6, v0"); A("v_and_b32 v0, 63, v0"); A("v_readfirstlane_b32 s40, v1")
    A("s_lshr_b32 s68, s37, 4"); A("s_lshl_b32 s69, s36, 1"); A("s_add_u32 s68, s68, s69")
    A("s_and_b32 s69, s37, 15")
    A("s_cmp_ge_u32 s40, 4"); A("s_cbranch_scc1 k_s")
    part_g(A, opt)
    A("k_s:")
    part_s(A, opt)
    A("k_end:"); A("s_endpgm")
    A("k_last:")
    return p


def part_g(A, opt):
    lg = Cnt(A, "lgkmcnt"); vm = Cnt(A, "vmcnt")
    plain = opt.get("plainsm")
    ACC = 16; F = [112, 132]; WP = 152; ID = 160; RAW = 168
    cvt = lambda d, s_, n=8: [f"v_cvt_pk_bf16_f32 v{d+i}, v{s_+2*i}, v{s_+2*i+1}" for i in range(n)]
    mf = lambda d, a, b, first: f"{MF32} {vr(d,16)}, {vr(a,4)}, {vr(b,4)}, " + ("0" if first else vr(d, 16))
    A("s_and_b32 s42, s40, 1"); A("s_lshr_b32 s43, s40, 1")
    A("s_lshl_b32 s47, s36, 5"); A("s_add_u32 s47, s47, s37"); A("s_lshl_b32 s47, s47, 2"); A("s_add_u32 s47, s47, s40")
    A("v_and_b32 v8, 31, v0"); A("s_lshl_b32 s60, s47, 8"); A("v_lshl_add_u32 v2, v8, 3, s60"); A("s_lshl_b32 s60, s47, 1"); A("v_mov_b32 v3, s60")
    A("s_lshl_b32 s44, s38, 1"); A("s_add_u32 s44, s44, s42")
    A("s_lshl_b32 s45, s44, 1"); A("s_add_u32 s45, s45, s43"); A("s_lshl_b32 s45, s45, 10")
    A("v_lshl_add_u32 v4, v0, 4, s45")
    A("s_waitcnt lgkmcnt(0)")
    if opt.get("stamps"): A("s_mov_b32 s80, s96")
    epoch(A)
    vm.issue("global_load_ushort v180, v3, s[26:27]", "par")
    for a in range(6): vm.issue(f"global_load_dwordx2 {vr(RAW+2*a,2)}, v2, s[{14+2*a}:{15+2*a}]", "par")
    vm.issue("global_load_dwordx4 v[12:15], v4, s[8:9]", "wphi")
    if not opt.get("nocodepf"):
        A("s_getpc_b64 s[62:63]")
        A("k_pc:")
        A("s_and_b32 s61, s37, 7"); A("s_lshl_b32 s61, s61, 5"); A("v_add_u32 v7, s61, v8"); A("v_lshlrev_b32 v7, 7, v7")
        A("v_min_u32 v7, k_last-k_pc-4, v7")
        vm.issue("global_load_dword v181, v7, s[62:63]", "code")
    srd(A, 56, 34, WS_SIZE); A(f"s_mov_b32 s72, {OOB}")
    A("s_lshl_b32 s73, s38, 2"); A("s_add_u32 s73, s73, s40"); A("s_lshl_b32 s73, s73, 4")
    A("v_lshrrev_b32 v9, 5, v0")
    A("v_lshlrev_b32 v10, 2, v9"); A("v_sub_u32 v10, v8, v10")
    A("v_mov_b32 v11, 0x3f80"); A("v_mov_b32 v7, 0x3f800000")
    for t in range(2):
        for wd in range(4):
            c0 = 16 * t + 8 * (wd >> 1) + 2 * (wd & 1); d = ID + 4 * t + wd
            A(f"v_cmp_eq_u32 vcc, {c0}, v10"); A(f"v_cmp_eq_u32 s[48:49], {c0+1}, v10")
            A(f"v_cndmask_b32 v{d}, 0, v11, vcc"); A(f"v_cndmask_b32 v{d}, v{d}, v7, s[48:49]")
    A("s_lshl_b32 s46, s43, 13")
    A("v_bfe_u32 v10, v8, 1, 3"); A("v_xor_b32 v10, v10, v9"); A("v_lshl_add_u32 v11, v8, 7, s46")
    for t in range(4):
        A(f"v_xor_b32 v7, {2*t}, v10"); A(f"v_lshl_add_u32 v{2+t}, v7, 4, v11")
    A("v_bfe_u32 v10, v0, 2, 2")
    A("v_lshrrev_b32 v11, 1, v10"); A("v_xor_b32 v11, s42, v11")
    A("v_lshl_add_u32 v7, v9, 3, v10"); A("v_lshlrev_b32 v7, 7, v7"); A("v_lshl_add_u32 v7, v11, 6, v7")
    A("v_bfe_u32 v11, v0, 4, 1"); A("v_lshlrev_b32 v1, 5, v11"); A("v_and_b32 v11, 3, v0"); A("v_lshl_add_u32 v1, v11, 3, v1")
    A("v_add_u32 v7, v7, v1"); A(f"v_add_u32 v6, {WOFF}, v7")
    A("v_lshl_add_u32 v10, v9, 2, v10"); A("v_lshl_add_u32 v1, v10, 6, v1")
    A("s_lshl_b32 s60, s42, 11"); A(f"s_add_u32 s60, s60, {WPHI_L}"); A("v_add_u32 v1, s60, v1")
    HF = "s[70:71]"
    A(f"v_cmp_eq_u32 {HF}, 1, v9")
    DT, AR, AI, t0, t1 = 182, 184, 185, 186, 187
    W1, W256, W2, W4, W8, W32, W40, E4, CC, GA, GB, GC, GD, WQ, LA, LC = range(188, 220, 2)
    KD = 224; AF = [240, 32]; DH = [112, 128]; DL = [144, 16]
    for r in range(16): A(f"v_mov_b32 v{KD+r}, 0")
    for r in range(32, 96): A(f"v_mov_b32 v{ACC+r}, 0")
    A("s_lshl_b32 s60, s42, 1"); A("s_add_u32 s60, s60, s43"); A("s_lshl_b32 s60, s60, 10"); A(f"s_add_u32 s60, s60, {WPHI_L}")
    A("v_lshl_add_u32 v10, v0, 4, s60")
    A("s_lshl_b32 s60, s40, 12"); A(f"s_add_u32 s60, s60, {KD_L}"); A("v_lshl_add_u32 v11, v0, 4, s60")
    A("s_mul_i32 s47, s43, 0x80008000")
    vm.need("par")
    lg.drain()
    stamp(A, opt, 1)
    A("v_lshlrev_b32 v180, 16, v180"); A(f"s_mov_b32 s75, {hex(LOG2E)}")
    A(f"v_mul_f32 v{t0}, s75, v180"); A(f"v_fma_f32 v{t1}, v180, s75, -v{t0}"); A(f"v_fmac_f32 v{t1}, 0x32a57060, v180")
    A(f"v_exp_f32 v{t0}, v{t0}"); A(f"v_mul_f32 v{t1}, 0x3f317218, v{t1}"); A(f"v_fma_f32 v{t0}, v{t0}, v{t1}, v{t0}")
    A(f"v_cvt_pk_bf16_f32 v{DT}, v{t0}, v{t0}"); A(f"v_lshlrev_b32 v{DT}, 16, v{DT}")
    pc = opt.get("plainc")
    pk = (lambda t: unpk(t)) if pc else (lambda t: [t])
    cm = lambda r, z, w: [x.split("\n") for x in cmul(r, z, w, pc)]
    post = []
    for s in range(4):
        post += [f"v_cvt_pk_bf16_f32 v{DH[0]+4*s+i}, v{DH[0]+4*s+i}, v{DH[1]+4*s+i}" for i in range(4)]
        post += [f"v_cvt_pk_bf16_f32 v{DL[0]+4*s+i}, v{DL[0]+4*s+i}, v{DL[1]+4*s+i}" for i in range(4)]
        if s: post.insert(len(post) - 6, mf(KD, DH[0] + 4 * s - 4, DL[0] + 4 * s - 4, False))
    lastk = mf(KD, DH[0] + 12, DL[0] + 12, False)
    tm = lambda t: [mf(d, AF[t] + 4 * i, ID + 4 * t, t == 0) for i, d in enumerate((DH[0], DH[1], DL[0], DL[1]))]
    A("s_mov_b32 s50, 0")
    A("k_kgen:")
    pre = [f"v_lshlrev_b32 v{d}, 16, v{RAW+2*a}" for d, a in [(AR, 0), (AI, 1), (GA, 2), (GA + 1, 3), (GB, 4), (GB + 1, 5)]]
    pre += [f"v_mul_f32 v{AR}, v{AR}, v{DT}", f"v_mul_f32 v{AI}, v{AI}, v{DT}", f"v_mul_f32 v{AR}, {hex(LOG2E)}, v{AR}", f"v_mul_f32 v{AI}, {hex(INV2PI)}, v{AI}"]
    sh = []
    for a in range(6): sh += [f"v_alignbit_b32 v{RAW+2*a}, v{RAW+2*a+1}, v{RAW+2*a}, 16", f"v_lshrrev_b32 v{RAW+2*a+1}, 16, v{RAW+2*a+1}"]
    pre += [f"v_exp_f32 v{t0}, v{AR}", f"v_fract_f32 v{t1}, v{AI}", f"v_cos_f32 v{W1}, v{t1}", f"v_sin_f32 v{W1+1}, v{t1}"] + sh[:2]
    pre += [f"v_mul_f32 v{W1}, v{W1}, v{t0}", f"v_mul_f32 v{W1+1}, v{W1+1}, v{t0}",
            f"v_mul_f32 v{t0}, 0x43800000, v{AR}", f"v_mul_f32 v{t1}, 0x43800000, v{AI}",
            f"v_exp_f32 v{t0}, v{t0}", f"v_fract_f32 v{t1}, v{t1}", f"v_cos_f32 v{W256}, v{t1}", f"v_sin_f32 v{W256+1}, v{t1}"] + sh[2:4]
    pre += [f"v_mul_f32 v{W256}, v{W256}, v{t0}", f"v_mul_f32 v{W256+1}, v{W256+1}, v{t0}"] + sh[4:]
    for r in range(16): pass
    weave(A, pre[:30], tm(1))
    for x in pre[30:]: A(x)
    A("s_cmp_eq_u32 s50, 0"); A("s_cbranch_scc1 k_kfirst")
    for x in post: A(x)
    A("s_nop 1"); A(lastk)
    A("k_kfirst:")
    def two(c1, c2):
        for x in c1[0] + c2[0] + c1[1] + c2[1]: A(x)
    def one(c1, fill):
        for x in c1[0] + fill[:1] + c1[1] + fill[1:]: A(x)
    two(cm(W2, W1, W1), cm(CC, GA, GB))
    one(cm(W4, W2, W2), [f"v_mul_f32 v{CC}, v{CC}, v{DT}", f"v_mul_f32 v{CC+1}, v{CC+1}, v{DT}"])
    one(cm(W8, W4, W4), [f"v_cndmask_b32 v{E4}, 1.0, v{W4}, {HF}", f"v_cndmask_b32 v{E4+1}, 0, v{W4+1}, {HF}"])
    two(cm(W40, W8, W8), cm(GA, CC, E4))
    two(cm(W32, W40, W40), cm(GB, GA, W1))
    two(cm(W40, W32, W8), cm(GC, GB, W1))
    A(f"v_cndmask_b32 v{LA}, 1.0, v{W32}, {HF}"); A(f"v_cndmask_b32 v{LA+1}, 0, v{W32+1}, {HF}")
    hi = [None, None, None, (GD, GC, W1), (GB, GA, W256), (GC, GB, W2), (GD, GC, W2), (WQ, W256, E4),
          (GA, GB, W256), (GC, GA, W4), (GB, GA, W256), (GD, GB, W4), (GA, GB, WQ), (GC, GA, W256), (GB, GC, W256), (GD, GB, W256)]
    hreg = [GA, GB, GC, GD, GB, GC, GD, GD, GA, GC, GB, GD, GA, GC, GB, GD]
    def hpack(k):
        x, y = hreg[k - 1], hreg[k]; wd = AF[k >> 3] + ((k >> 1) & 3)
        return [f"v_cvt_pk_bf16_f32 v{wd}, v{x}, v{y}", f"v_cvt_pk_bf16_f32 v{wd+4}, -v{x+1}, -v{y+1}"]
    def lpack(k):
        wd = AF[k >> 3] + ((k >> 1) & 3)
        return [f"v_cvt_pk_bf16_f32 v{wd+8}, v{LA}, v{LC}", f"v_cvt_pk_bf16_f32 v{wd+12}, v{LA+1}, v{LC+1}"]
    for x in hpack(1): A(x)
    pendm = []
    for k in range(1, 16):
        cl_ = cm(LC, LA, W8) if k & 1 else cm(LA, LC, W8 if k & 3 else W40)
        if hi[k] is None: one(cl_, ["s_nop 0"] if not pc else [])
        else: two(cm(*hi[k]), cl_)
        if k & 1:
            P_ = (hpack(k) if k > 1 else ["s_nop 0"]) + lpack(k)
            if k >= 9: A(tm(0)[(k - 9) >> 1])
            for x in P_: A(x)
    A("s_add_u32 s50, s50, 1"); A("s_cmp_lt_u32 s50, 4")
    A("s_cbranch_scc1 k_kgen")
    vm.need("wphi")
    x = tm(1); A(x[0]); A(x[1])
    lg.issue("ds_write_b128 v10, v[12:15]")
    A(x[2]); A(x[3]); A("s_add_u32 s53, s53, 1")
    for x in post: A(x)
    A("s_nop 1"); A(lastk)
    for r in range(32): A(f"v_mov_b32 v{ACC+r}, 0")
    for i in range(4): lg.issue(f"ds_write_b128 v11, {vr(KD+4*i,4)} offset:{1024*i}")
    stamp(A, opt, 13)
    lg.drain()

    def reads(fs, t):
        b = F[fs]
        def W(g): return [(f"ds_read_b64_tr_b16 {vr(b+8+4*g+2*j,2)}, v6 offset:{t*6144+g*2048+j*512}", ("w", fs, g)) for j in range(2)]
        return [(f"ds_read_b128 {vr(b,4)}, v{2+t}", ("x", fs, 0))] + W(0) + [(f"ds_read_b128 {vr(b+4,4)}, v{2+t} offset:4096", ("x", fs, 1))] + W(1) + W(2)

    def mfs(fs):
        R = []
        for i in range(6):
            b = F[fs]; g = i // 2; blk = i % 2; a = ACC + 16 * i
            X = vr(b + 4 * blk, 4); Wf = vr(b + 8 + 4 * g, 4)
            R.append((f"{MF32} {vr(a,16)}, " + (f"{Wf}, {X}" if g < 2 else f"{X}, {Wf}") + f", {vr(a,16)}", {("x", fs, blk), ("w", fs, g)}))
        return R
    A("s_mov_b32 s50, 0"); A("s_mov_b32 s51, 0")
    A("s_barrier")
    stamp(A, opt, 2)
    if opt.get("stamps"): A("s_memtime s[98:99]"); A("s_waitcnt lgkmcnt(0)")
    for t in range(2):
        for j in range(2):
            lg.issue(f"ds_read_b64_tr_b16 {vr(WP+4*t+2*j,2)}, v1 offset:{(16*t+8*j)*64}", "wp")
    for r, tg in reads(0, 0): lg.issue(r, tg)
    lg.need("wp")
    for i in range(8): A(f"v_xor_b32 v{WP+i}, s47, v{WP+i}")
    q0 = list(lg.q)
    slots = [2, 2, 2, 2, 0, 0]
    A("k_gloop:")
    for t in range(4):
        fs = t & 1; R = reads(fs ^ 1, (t + 1) & 3); M = mfs(fs); ri = 0; last = (t == 3)
        if last:
            A("s_add_u32 s51, s51, 1"); A(f"s_mov_b32 s52, {STAGE}"); A("s_cmp_eq_u32 s51, 3")
            A(f"s_cselect_b32 s52, {(-2*STAGE)&0xffffffff}, s52"); A("s_cselect_b32 s51, 0, s51")
        for i, (m, tags) in enumerate(M):
            lg.need(tags); A(m)
            if last and i == 0:
                A("v_add_u32 v2, s52, v2"); A("v_add_u32 v6, s52, v6")
            for k in range(slots[i]): lg.issue(*R[ri]); ri += 1
            if last and i == 4:
                for a in (3, 4, 5): A(f"v_add_u32 v{a}, s52, v{a}")
                A("s_add_u32 s50, s50, 1"); A(f"s_cmp_lt_u32 s50, {NST}")
            if t == 2 and i == 4: A(f"s_cmp_eq_u32 s50, {NST-1}")
            if t == 2 and i == 5:
                lg.drain(); A("s_cbranch_scc1 k_nobar"); A("s_barrier"); A("k_nobar:")
    vm.q = []
    assert lg.q == q0
    A("s_cbranch_scc1 k_gloop")
    lg.drain()
    stamp(A, opt, 3)
    if opt.get("stamps"): A("s_memtime s[96:97]"); A("s_waitcnt lgkmcnt(0)"); A("s_sub_u32 s95, s96, s98")
    Q, K, V = ACC, ACC + 32, ACC + 64
    KB = 112; VB = 128; PK = [168, 184]; EN = [200, 216]; T = [232, 236]; ONES = 8
    if opt.get("gp", 1): A(f"s_setprio {opt.get('gp', 1)}")
    lds_add(A, 3)
    A(f"s_mov_b32 s54, {hex(LOG2E)}"); A(f"s_mov_b32 s55, {hex(LOG2E)}")
    for x in cvt(KB, K): A(x)
    x = cvt(KB + 8, K + 16)
    A(x[0]); A(mf(PK[0], WP, KB, True))
    for y in x[1:]: A(y)
    A(mf(PK[0], WP + 4, KB + 4, False))
    x = cvt(VB, V) + cvt(VB + 8, V + 16)
    weave(A, x, [mf(PK[1], WP, KB + 8, True), mf(PK[1], WP + 4, KB + 12, False)])
    for i in range(4): A(f"v_mov_b32 v{ONES+i}, 0x3f803f80")
    A(f"s_mul_i32 s60, s40, 4352"); A(f"s_add_u32 s60, s60, {X_L}")
    A("s_xor_b32 s61, s40, 2"); A(f"s_mul_i32 s61, s61, 4352"); A(f"s_add_u32 s61, s61, {X_L}")
    PH = [48, 64]; KV = [80, 96]; TA = [112, 48]; Z = [168, 200]
    st0, fin0 = softmax_parts(PK[0], EN[0], T[0], PH[0], PH[0] + 8, 54, plain)
    st1, fin1 = softmax_parts(PK[1], EN[1], T[1], PH[1], PH[1] + 8, 54, plain)
    zipper(A, st0, st1)
    TD = [[PK[0], EN[0]], [PK[1], EN[1]]]
    half = len(fin0) // 2
    trn = lambda b, s: [mf(TD[b][s], PH[b] + 8 * s + 4 * t, ID + 4 * t, t == 0) for t in range(2)]
    kvm = lambda b, s: [mf(KV[s], TA[b] + 8 * s + 4 * t, VB + 8 * b + 4 * t, b == 0 and t == 0) for t in range(2)]
    zm = lambda b, s: [mf(Z[s], ONES, TA[b] + 8 * s + 4 * t, b == 0 and t == 0) for t in range(2)]
    for y in fin0[:half]: A(y)
    weave(A, fin0[half:], trn(0, 1), 2)
    weave(A, fin1[:half], trn(0, 0), 2)
    weave(A, fin1[half:], trn(1, 1), 2)
    weave(A, cvt(TA[0] + 8, TD[0][1]) + cvt(TA[0], TD[0][0]), trn(1, 0), 2)
    weave(A, cvt(TA[1] + 8, TD[1][1]), kvm(0, 1))
    adr = ["v_lshl_add_u32 v12, v0, 4, s60", "v_lshl_add_u32 v13, v0, 4, s61", "v_lshl_add_u32 v14, v0, 2, s60", "v_lshl_add_u32 v15, v0, 2, s61",
           "v_lshlrev_b32 v5, 4, v0", "v_lshlrev_b32 v6, 2, v0", "v_cmp_gt_u32 vcc, 32, v0", f"v_mov_b32 v4, {OOB}", "s_nop 0", "v_cndmask_b32 v4, v4, v6, vcc"]
    weave(A, cvt(TA[1], TD[1][0]) + adr, kvm(1, 1) + zm(0, 1))
    for y in zm(1, 1) + kvm(0, 0): A(y)
    A("s_lshl_b32 s62, s42, 2"); A(f"s_add_u32 s62, s62, {CNT_L}")
    A("s_add_u32 s67, s73, s39")
    A("s_lshl_b32 s74, s67, 11"); A(f"s_add_u32 s74, s74, {WS_KVP}"); A("s_lshl_b32 s75, s67, 7"); A(f"s_add_u32 s75, s75, {WS_ZP}")
    rest = kvm(1, 0) + zm(0, 0) + zm(1, 0)
    for i in range(4):
        lg.issue(f"ds_write_b128 v12, {vr(KV[1]+4*i,4)} offset:{1024*i}")
        A(rest[i])
    lg.issue(f"ds_write_b32 v14, v{Z[1]} offset:4096")
    for y in rest[4:]: A(y)
    lg.drain()
    lds_add(A, "s62")
    lds_wait(A, "k_spinA", "s62", 2)
    for i in range(4): lg.issue(f"ds_read_b128 {vr(KV[1]+4*i,4)}, v13 offset:{1024*i}", i)
    lg.issue(f"ds_read_b32 v{Z[1]}, v15 offset:4096", "z")
    PB = 128
    for i in range(4):
        lg.need(i)
        for j in range(4): A(f"v_add_f32 v{KV[0]+4*i+j}, v{KV[0]+4*i+j}, v{KV[1]+4*i+j}")
        for j in range(2): A(f"v_cvt_pk_bf16_f32 v{PB+2*i+j}, v{KV[0]+4*i+2*j}, v{KV[0]+4*i+2*j+1}")
        if i & 1: vm.issue(f"buffer_store_dwordx4 {vr(PB+4*(i>>1),4)}, v5, s[56:59], s74 offen offset:{1024*(i>>1)} sc1")
    lg.need("z")
    A(f"v_add_f32 v2, v{Z[0]}, v{Z[1]}")
    vm.issue("buffer_store_dword v2, v4, s[56:59], s75 offen sc1")
    stamp(A, opt, 4)
    rel = opt.get("rel", 0)
    if rel == 0: lds_add(A, 2)
    QB = 112; PQ = [168, 184]; PHQ = [16, 32]
    for y in cvt(QB, Q): A(y)
    weave(A, cvt(QB + 8, Q + 16), [mf(PQ[0], WP, QB, True), mf(PQ[0], WP + 4, QB + 4, False)], 1)
    A(mf(PQ[1], WP, QB + 8, True)); A(mf(PQ[1], WP + 4, QB + 12, False))
    IDC = 64
    for i in range(8): A(f"v_mov_b32 v{IDC+i}, v{ID+i}")
    A("s_lshl_b32 s75, s73, 7"); A(f"s_add_u32 s75, s75, {WS_ZP}")
    A("s_lshl_b32 s76, s73, 7"); A(f"s_add_u32 s76, s76, {WS_FK}"); A("s_lshl_b32 s77, s39, 7"); A("s_add_u32 s77, s77, s76")
    st0, fin0 = softmax_parts(PQ[0], EN[0], T[0], PHQ[0], PHQ[0] + 8, 54, plain or opt.get("plainq"))
    st1, fin1 = softmax_parts(PQ[1], EN[1], T[1], PHQ[1], PHQ[1] + 8, 54, plain or opt.get("plainq"))
    cut = opt.get("sigat", 20)
    zipper(A, st0[:cut], st1[:cut])
    vm.drain(); signal(A, vm, "s77", 5, 72)
    stamp(A, opt, 14)
    zipper(A, st0[cut:], st1[cut:]); zipper(A, fin0, fin1)
    A("v_and_b32 v2, 15, v0"); A("v_lshlrev_b32 v2, 7, v2")
    if rel == 1: lds_add(A, 2)
    A("v_and_b32 v8, 31, v0"); A("v_lshrrev_b32 v9, 4, v8"); A("v_lshlrev_b32 v9, 5, v9")
    A("v_bfe_u32 v10, v8, 2, 1"); A("v_lshl_add_u32 v9, v10, 4, v9"); A("v_bfe_u32 v10, v8, 3, 1"); A("v_lshl_add_u32 v9, v10, 3, v9")
    A("v_and_b32 v10, 3, v8"); A("v_lshl_add_u32 v9, v10, 1, v9")
    A("s_lshl_b32 s70, s42, 7"); A(f"s_add_u32 s70, s70, {X_L+8192}"); A("s_lshl_b32 s71, s43, 6"); A("s_add_u32 s71, s71, s70"); A("v_add_u32 v9, s71, v9")
    A("v_lshrrev_b32 v11, 5, v0"); A("v_lshl_add_u32 v10, v11, 4, s71"); A("v_xor_b32 v11, 64, v10")
    A("s_lshl_b32 s71, s40, 11"); A(f"s_add_u32 s71, s71, {X_L}"); A("v_add_u32 v12, s71, v5")
    A("s_xor_b32 s71, s40, 2"); A("s_lshl_b32 s71, s71, 11"); A(f"s_add_u32 s71, s71, {X_L}"); A("v_add_u32 v13, s71, v5")
    A("s_lshl_b32 s74, s73, 11"); A(f"s_add_u32 s74, s74, {WS_KVP}")
    stamp(A, opt, 5)
    LD = 112; ZL = 48; RED = 80
    gpoll(A, "k_poll", "buffer_load_dword v4, v2, s[56:59], s76 offen sc1", 4, "v_cmp_ne_u32 vcc, s53, v4", opt.get("sleep", 2), 100 if opt.get("stamps") else None)
    vm.q = []
    stamp(A, opt, 6)
    for i in range(8): vm.issue(f"buffer_load_dword v{ZL+i}, v6, s[56:59], s75 offen offset:{256*i} sc1", ("z", i))
    for r in range(16):
        if not r & 1:
            A(f"s_add_u32 s60, s39, {r>>1}"); A("s_and_b32 s60, s60, 7"); A("s_lshl_b32 s60, s60, 12"); A("s_add_u32 s60, s60, s74")
        for i in range(2):
            vm.issue(f"buffer_load_dwordx4 {vr(LD+8*r+4*i,4)}, v5, s[56:59], s60 offen offset:{(r&1)*2048+1024*i} sc1", (r, i))
    vm.need(("z", 7))
    for i in range(0, 8, 2): A(f"v_add_f32 v{ZL+i}, v{ZL+i}, v{ZL+i+1}")
    A(f"v_add_f32 v{ZL}, v{ZL}, v{ZL+2}"); A(f"v_add_f32 v{ZL+4}, v{ZL+4}, v{ZL+6}"); A(f"v_add_f32 v{ZL}, v{ZL}, v{ZL+4}")
    A(f"v_mov_b32 v{ZL+1}, v{ZL}"); A(f"v_permlane32_swap_b32 v{ZL}, v{ZL+1}"); A(f"v_add_f32 v{ZL}, v{ZL}, v{ZL+1}")
    A(f"v_cvt_pk_bf16_f32 v{ZL}, v{ZL}, v{ZL}")
    lg.issue(f"ds_write_b16 v9, v{ZL}")
    for r in range(16):
        for i in range(2):
            vm.need((r, i))
            x = LD + 8 * r + 4 * i
            A(mf(RED, IDC + 4 * i, x, r == 0 and i == 0))

    lds_add(A, 7)
    stamp(A, opt, 7)
    KF = 96; ZF = 112; NUM = [144, 160]; DEN = [176, 192]; OB = 208
    A("s_lshl_b32 s70, s39, 1"); A("s_add_u32 s70, s70, s43"); A("s_lshl_b32 s70, s70, 17"); A("s_lshl_b32 s71, s44, 11")
    A("s_add_u32 s70, s70, s71"); A(f"s_add_u32 s70, s70, {WS_O}"); A("s_add_u32 s71, s70, 65536")
    for y in cvt(KF, RED): A(y)
    for i in range(2): lg.issue(f"ds_write_b128 v12, {vr(KF+4*i,4)} offset:{1024*i}")
    for t in range(2):
        for b in range(2): A(mf(NUM[b], KF + 4 * t, PHQ[b] + 4 * t, t == 0))
    lg.drain()
    lds_add(A, "s62")
    lds_wait(A, "k_spinC", "s62", 4)
    for s in range(2):
        for t in range(2): lg.issue(f"ds_read_b128 {vr(ZF+8*s+4*t,4)}, v{10+s} offset:{32*t}", ("z", s, t))
    for t in range(2): lg.issue(f"ds_read_b128 {vr(KF+8+4*t,4)}, v13 offset:{1024*t}", ("k", t))
    for s in range(2):
        for t in range(2):
            lg.need(("z", s, t))
            for b in range(2): A(mf(DEN[b], ZF + 8 * s + 4 * t, PHQ[b] + 8 * s + 4 * t, s == 0 and t == 0))
    for b in range(2):
        for t in range(2):
            lg.need(("k", t))
            A(mf(NUM[b], KF + 8 + 4 * t, PHQ[b] + 8 + 4 * t, False))
    for b in range(2):
        A(f"v_add_f32 v{DEN[b]}, 0x358637bd, v{DEN[b]}"); A(f"v_rcp_f32 v{DEN[b]}, v{DEN[b]}")
    A("s_lshl_b32 s74, s43, 12"); A(f"s_add_u32 s74, s74, {WS_FO}")
    A("s_lshl_b32 s75, s39, 13"); A("s_add_u32 s75, s75, s74"); A("s_lshl_b32 s76, s44, 7"); A("s_add_u32 s75, s75, s76")
    A("s_lshl_b32 s76, s68, 13"); A("s_add_u32 s76, s76, s74")
    A("v_lshrrev_b32 v8, 5, v0"); A("v_bfe_u32 v9, v0, 2, 2"); A("v_lshl_add_u32 v10, v8, 2, v9"); A("v_lshlrev_b32 v10, 7, v10")
    for b in range(2):
        for i in range(16): A(f"v_mul_f32 v{NUM[b]+i}, v{NUM[b]+i}, v{DEN[b]}")
        for y in cvt(OB + 8 * b, NUM[b]): A(y)
        for t in range(2): vm.issue(f"buffer_store_dwordx4 {vr(OB+8*b+4*t,4)}, v5, s[56:59], s{70+b} offen offset:{1024*t} sc1")
    stamp(A, opt, 8)
    A("v_and_b32 v11, 1, v0"); A("v_lshl_add_u32 v10, v11, 5, v10"); A("v_bfe_u32 v11, v0, 4, 1"); A("v_lshl_add_u32 v10, v11, 4, v10")
    A("v_bfe_u32 v11, v0, 1, 1"); A("v_lshl_add_u32 v10, v11, 3, v10")
    A("v_lshrrev_b32 v9, 1, v9"); A("v_lshl_add_u32 v10, v9, 6, v10"); A("v_xor_b32 v11, 64, v10")
    for k in range(1, 3): A(f"v_add_u32 v{10+2*k}, {65536*k}, v10"); A(f"v_add_u32 v{11+2*k}, {65536*k}, v11")
    A("v_and_b32 v4, 31, v0"); A("v_lshlrev_b32 v4, 7, v4")
    A("s_lshl_b32 s77, s68, 2"); A("s_add_u32 s77, s77, s40"); A("s_lshl_b32 s77, s77, 16"); A(f"s_add_u32 s77, s77, {WS_O}")
    vm.drain()
    signal(A, vm, "s75", 5, 72)
    stamp(A, opt, 9)
    lds_wait(A, "k_wo1", 4, 4)
    gpoll(A, "k_opoll", "buffer_load_dword v9, v4, s[56:59], s76 offen sc1", 9, "v_cmp_ne_u32 vcc, s53, v9", opt.get("sleep2", 2), 101 if opt.get("stamps") else None)
    vm.q = []
    A("s_or_b32 s60, s2, s40"); A("s_cmp_eq_u32 s60, 0"); A(f"s_cselect_b32 s60, {WS_EP}, s72")
    A("v_mov_b32 v2, 0"); A("v_mov_b32 v3, s53"); A("s_mov_b64 exec, 1")
    vm.issue("buffer_store_dword v3, v2, s[56:59], s60 offen", "ep"); A("s_mov_b64 exec, -1")
    stamp(A, opt, 10)
    if opt.get("stamps"): A("s_memtime s[98:99]"); A("s_waitcnt lgkmcnt(0)")
    ACC2 = [16, 32]; WF = [48, 56, 64]; OF = 72; D = opt.get("look", 16); RING = D + 2

    def oload(p_):
        if p_ & 3 == 0:
            A(f"s_add_u32 s60, s69, {p_>>2}"); A("s_and_b32 s60, s60, 15"); A("s_lshl_b32 s60, s60, 12"); A("s_add_u32 s60, s60, s77")
        vm.issue(f"buffer_load_dwordx4 {vr(OF+4*(p_%RING),4)}, v5, s[56:59], s60 offen offset:{1024*(p_&3)} sc1", ("o", p_))

    def wreads(p_):
        base = UNIT[p_ >> 2] + 2048 * (p_ & 3); fs = p_ % 3
        for nb in range(2):
            for j in range(2):
                a = base + 1024 * j
                lg.issue(f"ds_read_b64_tr_b16 {vr(WF[fs]+4*nb+2*j,2)}, v{10+2*(a>>16)+nb} offset:{a&65535}", ("w", fs, nb))
    for p_ in range(D): oload(p_)
    wreads(0); wreads(1)
    for p_ in range(64):
        fs = p_ % 3
        if opt.get("g2st") and p_ in (0, 1, 16, 32): stamp(A, opt, {0: 1, 1: 2, 16: 3, 32: 4}[p_])
        if p_ + 2 == 44:
            if opt.get("g2st"): stamp(A, opt, 5)
            lg.drain(); lds_wait(A, "k_wo2", 5, 4)
            if opt.get("g2st"): stamp(A, opt, 6)
        if p_ + D == 64 and opt.get('ygate', 1): lg.drain(); lds_add(A, 8)
        if p_ < 62: wreads(p_ + 2)
        vm.need(("o", p_))
        for nb in range(2):
            lg.need(("w", fs, nb))
            A(mf(ACC2[nb], WF[fs] + 4 * nb, OF + 4 * (p_ % RING), p_ == 0))
            if nb == 0 and p_ + D < 64: oload(p_ + D)
    stamp(A, opt, 11)
    if opt.get("g2st"): A("s_memtime s[96:97]"); A("s_waitcnt lgkmcnt(0)"); A("s_sub_u32 s95, s96, s98")
    srd(A, 4, 30, 0x800000)
    A("s_lshl_b32 s64, s40, 12"); A(f"s_add_u32 s64, s64, {X_L}")
    A("v_and_b32 v13, 31, v0"); A("v_lshl_add_u32 v14, v13, 7, s64"); A("v_and_b32 v13, 7, v13"); A("v_lshlrev_b32 v15, 1, v8"); A("v_xor_b32 v13, v13, v15")
    A("v_lshrrev_b32 v1, 3, v0"); A("v_and_b32 v2, 7, v0")
    for nb in range(2):
        for y in cvt(64 + 8 * nb, ACC2[nb]): A(y)
        for i in range(2):
            A(f"v_xor_b32 v15, {4*nb+i}, v13"); A("v_lshl_add_u32 v15, v15, 4, v14")
            lg.issue(f"ds_write_b128 v15, {vr(64+8*nb+4*i,4)}")
    A("v_xor_b32 v13, v1, v2"); A("v_lshlrev_b32 v13, 4, v13"); A("v_lshl_add_u32 v13, v1, 7, v13"); A("v_add_u32 v13, s64, v13")
    A("s_lshl_b32 s64, s68, 19"); A("s_lshl_b32 s65, s40, 17"); A("s_add_u32 s64, s64, s65"); A("s_lshl_b32 s65, s69, 7"); A("s_add_u32 s64, s64, s65")
    A("v_lshlrev_b32 v14, 12, v1"); A("v_lshl_add_u32 v14, v2, 4, v14")
    lg.drain()
    for k in range(4): lg.issue(f"ds_read_b128 {vr(80+4*k,4)}, v13 offset:{1024*k}", k)
    om = {0: "", 1: " sc1", 2: " nt", 3: " sc0 sc1"}[opt.get("ost", 0)]
    for k in range(4):
        lg.need(k)
        A(f"buffer_store_dwordx4 {vr(80+4*k,4)}, v14, s[4:7], s64 offen" + om)
        if k < 3: A("s_add_u32 s64, s64, 32768")
    if opt.get("stamps"):
        A("s_waitcnt vmcnt(0)"); stamp(A, opt, 12); write_stamps(A)
    A("s_endpgm")


def first_use(order, k):
    n = sum(order[k])
    return all(sum(o) != n for o in order[:k])


def part_s(A, opt):
    lg = Cnt(A, "lgkmcnt"); vm = Cnt(A, "vmcnt")
    A("s_sub_u32 s41, s40, 4")
    A("v_lshrrev_b32 v1, 3, v0"); A("s_lshl_b32 s42, s41, 5"); A("v_add_u32 v5, s42, v1"); A("v_lshlrev_b32 v5, 11, v5")
    A("v_and_b32 v2, 7, v0"); A("v_lshrrev_b32 v3, 4, v0")
    for i in range(4):
        A(f"v_xor_b32 v4, {4*(i&1)}, v3"); A("v_xor_b32 v4, v4, v2"); A("v_lshl_add_u32 v4, v4, 4, v5")
        A(f"v_add_u32 v{8+i}, {16384*i-1024*i}, v4")
    A("s_lshl_b32 s42, s41, 4"); A("v_add_u32 v19, s42, v1"); A("v_mul_u32_u24 v5, 6144, v19"); A("s_lshl_b32 s42, s38, 7"); A("v_add_u32 v5, s42, v5")
    A("v_bfe_u32 v3, v0, 4, 1"); A("v_lshlrev_b32 v4, 2, v3"); A("v_xor_b32 v6, v4, v2"); A("v_lshl_add_u32 v4, v6, 4, v5")
    for half in range(2):
        for g in range(3):
            idx = 2 * g + half
            A(f"v_add_u32 v{12+idx}, {half*8*6144+g*2048-1024*(idx&3)}, v4")
    A("s_lshl_b32 s43, s41, 12"); A("s_mul_i32 s44, s41, 6144"); A(f"s_add_u32 s44, s44, {WOFF}")
    A("s_lshr_b32 s45, s37, 2"); A("s_add_u32 s45, s45, s37")
    A("s_lshl_b32 s46, s39, 18")
    A("s_waitcnt lgkmcnt(0)")
    if opt.get("stamps"): A("s_mov_b32 s80, s96")
    srd(A, 48, 4, 0x40000, add="s46"); srd(A, 64, 6, 0x600000)

    def issue(i):
        buf = (i % 3) * STAGE
        A(f"s_add_u32 s60, s45, {i&3}"); A("s_and_b32 s60, s60, 3")
        if i & 12: A(f"s_or_b32 s60, s60, {i&12}")
        A("s_lshl_b32 s61, s60, 7"); A(f"s_mul_i32 s62, s60, {64*6144}")
        A(f"s_add_u32 m0, s43, {buf}")
        for k in range(4): vm.issue(f"buffer_load_dwordx4 v{8+k}, s[48:51], s61 offen offset:{1024*k} lds", ("st", i))
        A(f"s_add_u32 m0, s44, {buf}")
        for k in range(4): vm.issue(f"buffer_load_dwordx4 v{12+k}, s[64:67], s62 offen offset:{1024*k} lds", ("st", i))
        A(f"s_add_u32 m0, s44, {buf+4096}")
        for k in range(2): vm.issue(f"buffer_load_dwordx4 v{16+k}, s[64:67], s62 offen offset:{1024*k} lds", ("st", i))

    issue(0)
    A("s_lshl_b32 s20, s69, 18"); A("s_lshl_b32 s71, s68, 7"); A("s_add_u32 s20, s20, s71"); A("s_lshl_b32 s71, s41, 16"); A("s_add_u32 s20, s20, s71")
    A("v_lshlrev_b32 v24, 11, v1"); A("v_lshl_add_u32 v24, v2, 4, v24")
    A("s_lshl_b32 s21, s41, 12"); A(f"s_add_u32 s21, s21, {UT_L}")
    srd(A, 24, 12, 0x400000); A("s_mov_b32 m0, s21")
    for k in range(4):
        vm.issue(f"buffer_load_dwordx4 v24, s[24:27], s20 offen offset:{1024*k} lds", "uin")
        if k < 3: A(f"s_add_u32 s20, s20, {16384-1024}")
    issue(1); issue(2)
    UIN = 128; KD = 108; HF = "s[72:73]"
    A("s_lshl_b32 s47, s36, 5"); A("s_add_u32 s47, s47, s37"); A("s_lshl_b32 s47, s47, 2"); A("s_add_u32 s47, s47, s41")
    A("v_and_b32 v18, 31, v0"); A("s_lshl_b32 s60, s47, 1"); A("v_mov_b32 v5, s60")
    vm.issue("global_load_ushort v22, v5, s[28:29]", "par")
    epoch(A)
    srd(A, 56, 34, WS_SIZE)
    A("v_lshrrev_b32 v39, 4, v0"); A("v_bfe_u32 v4, v0, 2, 2"); A("v_lshl_add_u32 v4, v39, 3, v4"); A("v_lshlrev_b32 v4, 7, v4")
    A("v_and_b32 v40, 3, v0"); A("v_lshl_add_u32 v4, v40, 3, v4"); A("v_add_u32 v25, s21, v4")
    A("v_and_b32 v4, 15, v0"); A("v_lshlrev_b32 v26, 12, v4"); A("v_lshl_add_u32 v26, v39, 4, v26")
    A("s_lshl_b32 s70, s68, 18"); A("s_lshl_b32 s71, s69, 8"); A("s_add_u32 s70, s70, s71"); A("s_lshl_b32 s71, s41, 6"); A("s_add_u32 s70, s70, s71")
    if WS_UT: A(f"s_add_u32 s70, s70, {WS_UT}")
    A("s_lshl_b32 s60, s2, 2"); A("s_add_u32 s60, s60, s41"); A("s_lshl_b32 s60, s60, 11"); A("v_lshl_add_u32 v35, v4, 7, s60")
    A("v_lshlrev_b32 v19, 11, v19"); A("v_lshl_add_u32 v19, v6, 4, v19"); A("s_lshl_b32 s42, s69, 7"); A("v_add_u32 v19, s42, v19"); A(f"v_add_u32 v20, {16384-1024}, v19")
    A(f"s_mul_i32 s74, s41, {TBL}"); A(f"s_add_u32 s74, s74, {TB_L}")
    A("s_mul_i32 s63, s41, 4608"); A(f"s_add_u32 s63, s63, {U_L}")
    A("v_lshrrev_b32 v3, 5, v0"); A(f"v_cmp_eq_u32 {HF}, 1, v3")
    A("v_cmp_eq_u32 vcc, 0, v0"); A("v_lshlrev_b32 v5, 4, v0")
    A("s_lshl_b32 s60, s41, 12"); A(f"s_add_u32 s60, s60, {KD_L}"); A("v_add_u32 v21, s60, v5")
    A("v_min_u32 v36, 29, v0"); A("v_lshl_add_u32 v36, v36, 4, s63"); A("v_add_u32 v37, s63, v5"); A("v_lshlrev_b32 v38, 7, v0")
    A("s_lshl_b32 s22, s68, 13"); A(f"s_add_u32 s22, s22, {WS_FU}"); A("s_lshl_b32 s23, s69, 2"); A("s_add_u32 s23, s23, s41"); A("s_lshl_b32 s23, s23, 7"); A("s_add_u32 s23, s23, s22")
    for i in range(4): A(f"v_mov_b32 v{28+i}, 0")
    srd(A, 8, 10, 0x200000); A("s_lshl_b32 s3, s41, 11")

    def wo_groups(gs, regs=None):
        for n, g in enumerate(gs):
            A(f"s_add_u32 s60, s69, {g}"); A("s_and_b32 s60, s60, 15"); A("s_lshl_b32 s60, s60, 17")
            if regs is None:
                A(f"s_add_u32 m0, s3, {UNIT[g]}")
                for j in range(2): vm.issue(f"buffer_load_dwordx4 v{19+j}, s[8:11], s60 offen offset:{1024*j} lds", ("wo", g))
            else:
                for j in range(2): vm.issue(f"buffer_load_dwordx4 {vr(regs+8*n+4*j,4)}, v{19+j}, s[8:11], s60 offen offset:{1024*j}", ("wo", g))

    A("s_waitcnt lgkmcnt(0)"); A("s_add_u32 s53, s53, 1")
    for i in range(4): A(f"v_mov_b32 v{40+i}, s53")
    vm.need("uin")
    for cq in range(4):
        for j in range(2): lg.issue(f"ds_read_b64_tr_b16 {vr(UIN+4*cq+2*j,2)}, v25 offset:{512*j+32*cq}", cq)
    for cq in range(4):
        lg.need(cq)
        vm.issue(f"buffer_store_dwordx4 {vr(UIN+4*cq,4)}, v26, s[56:59], s70 offen sc1", "uout")
        if cq < 3: A("s_add_u32 s70, s70, 65536")
    vm.issue("buffer_load_dword v23, v35, s[8:11], 0 offen", "wot")
    stamp(A, opt, 12, True)
    A("s_barrier")
    stamp(A, opt, 1, True)
    for i in range(4): lg.issue(f"ds_read_b128 {vr(KD+4*i,4)}, v21 offset:{1024*i}")
    for i in range(13):
        vm.need(("st", i + 1)); A("s_barrier")
        if opt.get("steps"): A("s_memrealtime s[96:97]")
        issue(i + 3)
        if opt.get("steps"): A("s_waitcnt lgkmcnt(0)"); A(f"s_mov_b32 s{82+i}, s96")
        if i == 0: vm.need("par"); A("v_lshlrev_b32 v22, 16, v22"); A("v_cndmask_b32 v22, 0, v22, vcc")
        if i == 1: lg.drain()
        if i == 2:
            vm.need("uout")
            A("s_mov_b64 exec, 0xff"); vm.issue("buffer_store_dwordx4 v[40:43], v5, s[56:59], s23 offen sc1", "sig"); A("s_mov_b64 exec, -1")
        if i == 11: vm.issue("buffer_load_dword v44, v38, s[56:59], s22 offen sc1", "flag")
    if opt.get("sp", 3): A(f"s_setprio {opt.get('sp', 3)}")
    A("s_lshl_b32 s75, s47, 12"); A(f"s_add_u32 s76, s75, {WS_UT}")
    vm.need("flag")
    A("v_cmp_ne_u32 vcc, s53, v44"); A("s_cbranch_vccz k_uready")
    gpoll(A, "k_utpoll", "buffer_load_dword v44, v38, s[56:59], s22 offen sc1", 44, "v_cmp_ne_u32 vcc, s53, v44", 8)
    A("k_uready:")
    stamp(A, opt, 10, True)
    for i in range(4): vm.issue(f"buffer_load_dwordx4 {vr(UIN+4*i,4)}, v5, s[56:59], s76 offen offset:{1024*i} sc1", "u")
    WR = 184; WE = 144; WX = 224
    vm.need(("st", 14)); A("s_barrier")
    if opt.get("wo13", 0): wo_groups(range(opt.get("wo13", 0)))
    A(f"v_mov_b32 v1, {CNT_L}")
    for i in range(3): lg.issue(f"ds_write_b128 v1, v[28:31] offset:{16*i}")
    stamp(A, opt, 2, True)
    lg.drain()
    vm.need(("st", 15)); A("s_barrier")
    stamp(A, opt, 3, True)
    wo_groups(range(6, 11), WE); wo_groups(range(opt.get("wo13", 0), 6))
    d = lambda a, b: KD + 4 * a + b
    A("v_add_u32 v4, 31, v0"); A("v_subrev_u32 v2, 32, v0"); A(f"v_cndmask_b32 v4, v4, v2, {HF}"); A("v_lshlrev_b32 v4, 2, v4")
    lg.issue(f"ds_bpermute_b32 v44, v4, v{d(0,3)}", "prev")
    A(f"v_add_f32 v{d(0,0)}, v{d(0,0)}, v22")
    A(f"v_readlane_b32 s78, v{d(0,3)}, 63")
    A("v_lshl_add_u32 v2, v18, 5, s74"); A("v_lshl_add_u32 v4, v3, 4, v2")
    A("v_lshl_add_u32 v2, v3, 10, v2")
    A("v_and_b32 v1, 15, v0"); A("v_lshl_add_u32 v1, v1, 2, s74"); A("v_mov_b32 v45, 0")
    lg.issue("ds_write_b32 v1, v45")
    A("v_cmp_eq_u32 vcc, 0, v0"); A("v_and_b32 v1, 1, v0"); A("v_cmp_eq_u32 s[70:71], 1, v1")
    A("v_mov_b32 v46, s78"); A(f"v_cndmask_b32 v46, v{d(1,0)}, v46, vcc")
    q = 48
    A(f"v_cvt_pk_bf16_f32 v{q}, v{d(1,0)}, v46"); A(f"v_cvt_pk_bf16_f32 v{q+1}, v{d(1,0)}, v{d(1,0)}")
    A(f"v_cvt_pk_bf16_f32 v{q+2}, v{d(1,1)}, v{d(1,0)}"); A(f"v_cvt_pk_bf16_f32 v{q+3}, v{d(1,2)}, v{d(1,1)}")
    lg.issue(f"ds_write_b128 v4, {vr(q,4)} offset:{(16+256)*4}")
    for k in range(2):
        a, b = d(2, 2 * k), d(2, 2 * k + 1); q = 52 + 4 * k
        A(f"v_cvt_pk_bf16_f32 v{q}, v{a}, v{a}"); A(f"v_cvt_pk_bf16_f32 v{q+3}, v{b}, v{a}"); A(f"v_cvt_pk_bf16_f32 v47, v{b}, v{b}")
        A(f"v_mov_b32 v{q+1}, v{q}"); A(f"v_cndmask_b32 v{q+2}, v{q}, v{q+3}, {HF}"); A(f"v_cndmask_b32 v{q+3}, v{q+3}, v47, {HF}")
        lg.issue(f"ds_write_b128 v4, {vr(q,4)} offset:{(16+512+256*k)*4}")
    for k in range(2):
        a, b = d(3, 2 * k), d(3, 2 * k + 1); q = 60 + 8 * k
        A(f"v_permlane32_swap_b32 v{a}, v{b}")
        A(f"v_cvt_pk_bf16_f32 v{q}, v{a}, v{a}"); A(f"v_cvt_pk_bf16_f32 v47, v{b}, v{a}"); A(f"v_cvt_pk_bf16_f32 v{q+6}, v{b}, v{b}")
        for j in range(1, 4): A(f"v_mov_b32 v{q+j}, v{q}")
        A(f"v_mov_b32 v{q+7}, v{q+6}")
        A(f"v_cndmask_b32 v{q+4}, v{q}, v47, s[70:71]"); A(f"v_cndmask_b32 v{q+5}, v47, v{q+6}, s[70:71]")
        lg.issue(f"ds_write_b128 v2, {vr(q,4)} offset:{(16+1024+512*k)*4}")
        lg.issue(f"ds_write_b128 v2, {vr(q+4,4)} offset:{(16+1024+512*k)*4+16}")
    lg.need("prev")
    A("v_cndmask_b32 v44, v44, v45, vcc")
    q = 76
    A(f"v_cvt_pk_bf16_f32 v{q}, v{d(0,0)}, v44")
    for j in range(1, 4): A(f"v_cvt_pk_bf16_f32 v{q+j}, v{d(0,j)}, v{d(0,j-1)}")
    lg.issue(f"ds_write_b128 v4, {vr(q,4)} offset:64")
    AB = 8; BB = 16
    A("v_and_b32 v17, 15, v0"); A("v_lshrrev_b32 v2, 4, v0")
    A("v_lshlrev_b32 v4, 3, v2"); A("v_sub_u32 v4, v17, v4"); A("v_add_u32 v4, 26, v4"); A(f"v_lshl_add_u32 v{AB}, v4, 2, s74")
    for k in range(1, 8): A(f"v_add_u32 v{AB+k}, {1024*k}, v{AB}")
    A(f"v_lshlrev_b32 v4, 5, v17"); A("v_lshl_add_u32 v4, v2, 4, v4"); A(f"v_add_u32 v{BB}, s63, v4")
    wo_groups(range(11, 16), WR)
    lg.issue("ds_write_b128 v36, v[28:31]")
    vm.need("u")
    for i in range(4): lg.issue(f"ds_write_b128 v37, {vr(UIN+4*i,4)} offset:{480+1024*i}")
    lg.drain()
    stamp(A, opt, 11, True)
    lds_wait(A, "k_ldone", 3, 4)
    A("v_add_u32 v39, s3, v5")
    for n, g in enumerate(range(6, 11)):
        vm.need(("wo", g))
        for j in range(2): lg.issue(f"ds_write_b128 v39, {vr(WE+8*n+4*j,4)} offset:{UNIT[g]+1024*j}")
    vm.need(("wo", 5))
    lg.drain()
    lds_add(A, 4)
    stamp(A, opt, 4, True)
    lds_wait(A, "k_hold", 2, 4, sleep=1)
    stamp(A, opt, 5, True)
    if opt.get("sp", 3): A("s_setprio 0")
    Y = 24; FA = [56, 120]; FB = [88, 152]

    def creads(s0):
        fs = s0 & 1; R = []
        for k in range(8):
            a = FA[fs] + 4 * k; b = FB[fs] + 4 * k
            R.append((f"ds_read_b128 {vr(b,4)}, v{BB} offset:{448-64*s0+512*k}", ("b", fs, k)))
            R.append((f"ds_read2_b32 {vr(a,2)}, v{AB+k} offset0:{32*s0+6} offset1:{32*s0+4}", ("a", fs, k)))
            R.append((f"ds_read2_b32 {vr(a+2,2)}, v{AB+k} offset0:{32*s0+2} offset1:{32*s0}", ("a", fs, k)))
        return R
    for r, tg in creads(0): lg.issue(r, tg)
    for s0 in range(8):
        fs = s0 & 1; R = creads(s0 + 1) if s0 < 7 else []; ri = 0
        order = [(s1, nu) for m in range(8) for (s1, nu) in ([(m, x) for x in range(m + 1)] + [(x, m) for x in range(m)]) if s1 + nu < 8]
        for k, (s1, nu) in enumerate(order):
            n = s1 + nu
            lg.need({("a", fs, s1), ("b", fs, nu)})
            first = (s0 == 0 and first_use(order, k))
            A(f"{MF16} {vr(Y+4*n,4)}, {vr(FA[fs]+4*s1,4)}, {vr(FB[fs]+4*nu,4)}, " + ("0" if first else vr(Y + 4 * n, 4)))
            if k >= 8 and ri < len(R): lg.issue(*R[ri]); ri += 1
        while ri < len(R): lg.issue(*R[ri]); ri += 1
    if opt.get("sp", 3): A(f"s_setprio {opt.get('sp', 3)}")
    lg.drain()
    lds_add(A, 6)
    stamp(A, opt, 6, True)
    A("v_and_b32 v4, 1, v2"); A("v_lshlrev_b32 v4, 9, v4"); A("v_lshl_add_u32 v4, v17, 5, v4"); A("v_lshrrev_b32 v2, 1, v2"); A("v_lshl_add_u32 v4, v2, 4, v4")
    A(f"s_add_u32 s76, s75, {WS_YT}")
    for k in range(4):
        q = 56 + 4 * k
        for j in range(2):
            A(f"v_cvt_pk_bf16_f32 v{q+2*j}, v{Y+8*k+4*j}, v{Y+8*k+4*j+1}"); A(f"v_cvt_pk_bf16_f32 v{q+2*j+1}, v{Y+8*k+4*j+2}, v{Y+8*k+4*j+3}")
    for k in range(4):
        q = 56 + 4 * k
        A(f"v_permlane16_swap_b32 v{q}, v{q+2}"); A(f"v_permlane16_swap_b32 v{q+1}, v{q+3}")
    A("v_add_u32 v2, s3, v5")
    for i in range(4): A(f"v_mov_b32 v{40+i}, s53")
    lds_wait(A, "k_cdone", 6, 4, sleep=1)
    stamp(A, opt, 14, True)
    vm.drain()
    for n, g in enumerate(range(11, 16)):
        if UNIT[g] >= 65536 and UNIT[g - 1] < 65536: A("v_add_u32 v2, 0x10000, v2")
        for j in range(2): lg.issue(f"ds_write_b128 v2, {vr(WR+8*n+4*j,4)} offset:{(UNIT[g]&65535)+1024*j}")
    lg.drain()
    lds_add(A, 5)
    stamp(A, opt, 7, True)
    if opt.get("ggate", 1): lds_wait(A, "k_gdone", 7, 4, sleep=1)
    for k in range(4):
        q = 56 + 4 * k
        vm.issue(f"buffer_store_dwordx4 {vr(q,4)}, v4, s[56:59], s76 offen offset:{1024*k} sc1", "ys")
    A(f"s_add_u32 s23, s23, {WS_FY-WS_FU}"); A(f"s_add_u32 s22, s22, {WS_FY-WS_FU}")
    vm.drain()
    stamp(A, opt, 13, True)
    A("s_mov_b64 exec, 0xff"); vm.issue("buffer_store_dwordx4 v[40:43], v5, s[56:59], s23 offen sc1", "sig"); A("s_mov_b64 exec, -1")
    A("s_cmp_ge_u32 s41, 2" if not opt.get("noytile") else "s_cmp_ge_u32 s41, 0"); A("s_cbranch_scc1 k_sdone")
    YIN = 24; YOUT = 56
    srd(A, 4, 30, 0x800000)
    A("v_lshrrev_b32 v1, 3, v0"); A("v_and_b32 v2, 7, v0"); A("v_lshlrev_b32 v4, 7, v0")
    A("s_lshl_b32 s64, s68, 18"); A("s_lshl_b32 s65, s69, 8"); A("s_add_u32 s64, s64, s65"); A("s_lshl_b32 s65, s41, 7"); A("s_add_u32 s64, s64, s65"); A(f"s_add_u32 s64, s64, {WS_YT}")
    A("v_lshlrev_b32 v18, 15, v1"); A("v_lshl_add_u32 v18, v2, 4, v18")
    A("s_lshl_b32 s66, s69, 19"); A("s_lshl_b32 s65, s41, 18"); A("s_add_u32 s66, s66, s65"); A("s_lshl_b32 s65, s68, 7"); A("s_add_u32 s66, s66, s65"); A("s_add_u32 s66, s66, 2048")
    A("v_lshlrev_b32 v19, 15, v2"); A("v_lshl_add_u32 v19, v1, 4, v19")
    A("s_mov_b32 s70, 0x05040100"); A("s_mov_b32 s71, 0x07060302")
    if opt.get("ygate", 1): lds_wait(A, "k_ygate", 8, 4, sleep=2)
    gpoll(A, "k_ypoll", "buffer_load_dword v9, v4, s[56:59], s22 offen sc1", 9, "v_cmp_ne_u32 vcc, s53, v9", opt.get("sleep4", 8), 101 if opt.get("stamps") else None)
    vm.q = []
    stamp(A, opt, 8, True)
    for c in range(8):
        vm.issue(f"buffer_load_dwordx4 {vr(YIN+4*c,4)}, v18, s[56:59], s64 offen sc1", "y")
        if c < 7: A("s_add_u32 s64, s64, 4096")
    vm.need("y")
    om = {0: "", 1: " sc1", 2: " nt", 3: " sc0 sc1"}[opt.get("ost", 0)]
    for c in range(8):
        for k in range(4): A(f"v_perm_b32 v{YOUT+4*c+k}, v{YIN+4*(2*k+1)+(c>>1)}, v{YIN+4*(2*k)+(c>>1)}, s{70+(c&1)}")
        A(f"buffer_store_dwordx4 {vr(YOUT+4*c,4)}, v19, s[4:7], s66 offen" + om)
        if c < 7: A("s_add_u32 s66, s66, 4096")
    A("k_sdone:")
    if opt.get("stamps"):
        A("s_waitcnt vmcnt(0)"); stamp(A, opt, 9, True); write_stamps(A)


HEADER = """; Hedgehog linear attention (QKV GEMM, feature maps, kv/z all-reduce, output GEMM) + S4 long convolution, one launch.
; Kernarg (128 bytes of pointers): x, wqkv, w_phi, wo, u, A_re, A_im, B_re, B_im, C_re, C_im, log_dt, Dskip, out, debug, ws
; waves 0-3: matrix work of the attention branch; waves 4-7: tile loading, SSM kernel generation, convolution""".split("\n")


def build(opt):
    t = assemble_file([(KNAME, 256, 512, 163840, kernel(opt), 256, None)], header=HEADER, align=not opt.get('noalign'))
    if not opt.get("list"): t = t.replace(f"; @launch kernel={KNAME} grid", "; @launch grid")
    return t


if __name__ == "__main__":
    opt = {}
    for a in sys.argv[2:]:
        k, _, v = a.partition("="); opt[k] = int(v) if v else 1
    open(sys.argv[1], "w").write(build(opt))
```

```python
import sys, re
from asmgen import *

KNAME = "concat_heads__linear_kernel_hedgehog__ssm_conv_s4__prompt_kernel"
WS_UT = 0x0000000
WS_YT = 0x0400000
WS_O = 0x0800000
WS_KVP = 0x0C00000
WS_ZP = 0x0E00000
WS_FK = 0x0E40000
WS_FO = 0x0E60000
WS_FU = 0x0E80000
WS_FY = 0x0EA0000
WS_EP = 0x0EC0000
WS_DBG = 0x1000000
WS_SIZE = 0x10000000

STAGE = 40960
WOFF = 16384
NST = 16
TBL = 9216
TB_L = 40960
X_L = 77824
U_L = 95232
WPHI_L = 122880
UT_L = 126976
KD_L = 143360
CNT_L = 77760
UNIT = [122880 + 8192 * i for i in range(5)] + [113664] + [8192 * i for i in range(5)] + [40960 + 8192 * i for i in range(4)] + [95232]
LOG2E = 0x3FB8AA3B
INV2PI = 0x3E22F983
OOB = 0x7F000000
SPIN = 0x100000
MF32 = "v_mfma_f32_32x32x16_bf16"
MF16 = "v_mfma_f32_16x16x32_bf16"


def vr(a, n=1):
    return f"v{a}" if n == 1 else f"v[{a}:{a+n-1}]"


def cmul(r, z, w, plain=False):
    if plain:
        return [f"v_mul_f32 v{r}, v{z}, v{w}\nv_mul_f32 v{r+1}, v{z+1}, v{w}",
                f"v_fma_f32 v{r}, -v{z+1}, v{w+1}, v{r}\nv_fmac_f32 v{r+1}, v{z}, v{w+1}"]
    return [f"v_pk_mul_f32 {vr(r,2)}, {vr(z,2)}, {vr(w,2)} op_sel_hi:[1,0]",
            f"v_pk_fma_f32 {vr(r,2)}, {vr(z,2)}, {vr(w,2)}, {vr(r,2)} op_sel:[1,1,0] op_sel_hi:[0,1,1] neg_lo:[1,0,0]"]


def unpk(t):
    if not t.startswith("v_pk_"): return [t]
    mm = re.match(r"v_pk_(\w+)_f32 (.*)", t); op = mm.group(1)
    regs = re.findall(r"([vs])\[(\d+):\d+\]", mm.group(2)); neg = "neg_lo" in t
    hi = re.search(r"op_sel_hi:\[([\d,]+)\]", t); hi = [int(x) for x in hi.group(1).split(",")] if hi else [1, 1, 1]
    R = []
    for h in range(2):
        o = [f"{regs[0][0]}{int(regs[0][1])+h}"] + [f"{k}{int(n)+(h if hi[i] else 0)}" for i, (k, n) in enumerate(regs[1:])]
        if neg: o[1] = "-" + o[1]
        R.append(f"v_{op}_f32 " + ", ".join(o))
    return R


def srd(A, d, base, size, add=None):
    if add is None:
        A(f"s_mov_b32 s{d}, s{base}"); A(f"s_mov_b32 s{d+1}, s{base+1}")
    else:
        A(f"s_add_u32 s{d}, s{base}, {add}"); A(f"s_addc_u32 s{d+1}, s{base+1}, 0")
    A(f"s_mov_b32 s{d+2}, {size}"); A(f"s_mov_b32 s{d+3}, 0x20000")


def stamp(A, opt, k, s=False):
    if opt.get("stamps") and not (s and opt.get("steps") and k >= 2):
        A("s_memrealtime s[96:97]"); A("s_waitcnt lgkmcnt(0)"); A(f"s_mov_b32 s{80+k}, s96")


def write_stamps(A):
    A("s_lshl_b32 s70, s2, 3"); A("s_add_u32 s70, s70, s40"); A("s_lshl_b32 s70, s70, 6"); A(f"s_add_u32 s70, s70, {WS_DBG}")
    for i in range(16): A(f"v_mov_b32 v{16+i}, s{80+i}")
    A("v_mov_b32 v32, s100"); A("v_mov_b32 v33, s101"); A("v_mov_b32 v12, s70")
    A("v_add_u32 v13, 0x40000, v12"); A("global_store_dwordx2 v13, v[32:33], s[34:35]")
    for i in range(4): A(f"global_store_dwordx4 v12, {vr(16+4*i,4)}, s[34:35] offset:{16*i}")


def softmax_parts(P, En, T, o0, o1, sL, plain):
    m, nm = T, T + 2
    R = []; A = R.append
    A(f"v_max3_f32 v{m}, v{P}, v{P+1}, v{P+2}")
    A(f"v_max3_f32 v{nm}, -v{P}, -v{P+1}, -v{P+2}")
    for i in range(3, 15, 2):
        A(f"v_max3_f32 v{m}, v{m}, v{P+i}, v{P+i+1}")
        A(f"v_max3_f32 v{nm}, v{nm}, -v{P+i}, -v{P+i+1}")
    A(f"v_max_f32 v{m}, v{m}, v{P+15}")
    A(f"v_max_f32_e64 v{nm}, v{nm}, -v{P+15}")
    A(f"v_permlane32_swap_b32 v{m}, v{nm}")
    A(f"v_max_f32 v{m}, v{m}, v{nm}")
    A(f"v_mul_f32 v{m}, {hex(LOG2E | 0x80000000)}, v{m}")
    A(f"v_mov_b32 v{nm}, v{m}")
    A(f"v_permlane32_swap_b32 v{m}, v{nm}")
    for i in range(0, 16, 2):
        A(f"v_pk_fma_f32 {vr(En+i,2)}, {vr(P+i,2)}, s[{sL}:{sL+1}], {vr(nm,2)} op_sel_hi:[1,1,0] neg_lo:[1,0,0] neg_hi:[1,0,0]")
        A(f"v_pk_fma_f32 {vr(P+i,2)}, {vr(P+i,2)}, s[{sL}:{sL+1}], {vr(m,2)} op_sel_hi:[1,1,0]")
    for i in range(16):
        A(f"v_exp_f32 v{En+i}, v{En+i}")
        A(f"v_exp_f32 v{P+i}, v{P+i}")
    A(f"v_pk_add_f32 {vr(nm,2)}, {vr(En,2)}, {vr(En+2,2)}")
    A(f"v_pk_add_f32 {vr(m,2)}, {vr(P,2)}, {vr(P+2,2)}")
    for i in range(4, 16, 2):
        A(f"v_pk_add_f32 {vr(nm,2)}, {vr(nm,2)}, {vr(En+i,2)}")
        A(f"v_pk_add_f32 {vr(m,2)}, {vr(m,2)}, {vr(P+i,2)}")
    A(f"v_add_f32 v{nm}, v{nm}, v{nm+1}")
    A(f"v_add_f32 v{m}, v{m}, v{m+1}")
    A(f"v_permlane32_swap_b32 v{m}, v{nm}")
    A(f"v_add_f32 v{m}, v{m}, v{nm}")
    A(f"v_rcp_f32 v{m}, v{m}")
    A(f"v_mov_b32 v{nm}, v{m}")
    A(f"v_permlane32_swap_b32 v{m}, v{nm}")
    stats = R; R = []; A = R.append
    for src, r, o in ((En, nm, o1), (P, m, o0)):
        for i in range(0, 16, 2): A(f"v_pk_mul_f32 {vr(src+i,2)}, {vr(src+i,2)}, {vr(r,2)} op_sel_hi:[1,0]")
        for i in range(8): A(f"v_cvt_pk_bf16_f32 v{o+i}, v{src+2*i}, v{src+2*i+1}")
    if plain:
        stats = [y for x in stats for y in unpk(x)]; R = [y for x in R for y in unpk(x)]
    return stats, R


def zipper(A, a, b):
    for i in range(max(len(a), len(b))):
        if i < len(a): A(a[i])
        if i < len(b): A(b[i])


def weave(A, main, extra, start=0):
    n = len(main) - start; done = 0
    for i, x in enumerate(main):
        A(x)
        if i >= start:
            upto = (len(extra) * (i - start + 1) + n - 1) // n
            while done < min(upto, len(extra)): A(extra[done]); done += 1


def lds_add(A, cnt):
    A(f"v_mov_b32 v1, {CNT_L+4*cnt}" if isinstance(cnt, int) else f"v_mov_b32 v1, {cnt}")
    A("v_mov_b32 v7, 1"); A("s_mov_b64 exec, 1"); A("ds_add_u32 v1, v7"); A("s_mov_b64 exec, -1")


def lds_wait(A, name, cnt, target, sleep=0):
    A(f"v_mov_b32 v1, {CNT_L+4*cnt}" if isinstance(cnt, int) else f"v_mov_b32 v1, {cnt}")
    A(f"s_mov_b32 s79, {SPIN}")
    A(f"{name}:")
    A("ds_read_b32 v7, v1")
    A("s_sub_u32 s79, s79, 1"); A(f"s_cbranch_scc1 {name}_x")
    A("s_waitcnt lgkmcnt(0)")
    A("v_readfirstlane_b32 s78, v7"); A(f"s_cmp_ge_u32 s78, {target}"); A(f"s_cbranch_scc1 {name}_x")
    if sleep: A(f"s_sleep {sleep}")
    A(f"s_branch {name}")
    A(f"{name}_x:")
    A("s_waitcnt lgkmcnt(0)")


def gpoll(A, name, load, reg, bad, sleep, cnt=None):
    A(f"s_mov_b32 s79, {SPIN}")
    A(f"s_branch {name}")
    A(f"{name}_again:")
    A(f"s_sleep {sleep}")
    A(f"{name}:")
    A(load)
    A("s_sub_u32 s79, s79, 1"); A(f"s_cbranch_scc1 {name}_x")
    A("s_waitcnt vmcnt(0)")
    A(bad); A(f"s_cbranch_vccnz {name}_again")
    A(f"{name}_x:")
    A("s_waitcnt vmcnt(0)")
    if cnt: A(f"s_sub_u32 s{cnt}, {SPIN}, s79")


def epoch(A):
    A(f"s_add_u32 s0, s34, {WS_EP}"); A("s_addc_u32 s1, s35, 0"); A("s_load_dword s53, s[0:1], 0")


def signal(A, vm, soff, vaddr16, vtmp):
    for i in range(4): A(f"v_mov_b32 v{vtmp+i}, s53")
    A("s_mov_b64 exec, 0xff")
    vm.issue(f"buffer_store_dwordx4 {vr(vtmp,4)}, v{vaddr16}, s[56:59], {soff} offen sc1", "sig")
    A("s_mov_b64 exec, -1")


def kernel(opt):
    p = Prog(); A = p
    A("s_cmp_ge_u32 s2, 256"); A("s_cbranch_scc1 k_end")
    A("s_load_dwordx16 s[4:19], s[0:1], 0")
    A("s_load_dwordx16 s[20:35], s[0:1], 64")
    if opt.get("stamps"): A("s_memrealtime s[96:97]")
    A("s_and_b32 s36, s2, 7"); A("s_lshr_b32 s37, s2, 3")
    A("s_and_b32 s38, s36, 3"); A("s_lshl_b32 s38, s38, 2"); A("s_and_b32 s39, s37, 3"); A("s_add_u32 s38, s38, s39")
    A("s_lshr_b32 s39, s36, 2"); A("s_lshl_b32 s39, s39, 3"); A("s_lshr_b32 s41, s37, 2"); A("s_add_u32 s39, s39, s41")
    A("v_lshrrev_b32 v1, 6, v0"); A("v_and_b32 v0, 63, v0"); A("v_readfirstlane_b32 s40, v1")
    A("s_lshr_b32 s68, s37, 4"); A("s_lshl_b32 s69, s36, 1"); A("s_add_u32 s68, s68, s69")
    A("s_and_b32 s69, s37, 15")
    A("s_cmp_ge_u32 s40, 4"); A("s_cbranch_scc1 k_s")
    part_g(A, opt)
    A("k_s:")
    part_s(A, opt)
    A("k_end:"); A("s_endpgm")
    A("k_last:")
    return p


def part_g(A, opt):
    lg = Cnt(A, "lgkmcnt"); vm = Cnt(A, "vmcnt")
    plain = opt.get("plainsm")
    ACC = 16; F = [112, 132]; WP = 152; ID = 160; RAW = 168
    cvt = lambda d, s_, n=8: [f"v_cvt_pk_bf16_f32 v{d+i}, v{s_+2*i}, v{s_+2*i+1}" for i in range(n)]
    mf = lambda d, a, b, first: f"{MF32} {vr(d,16)}, {vr(a,4)}, {vr(b,4)}, " + ("0" if first else vr(d, 16))
    A("s_and_b32 s42, s40, 1"); A("s_lshr_b32 s43, s40, 1")
    A("s_lshl_b32 s47, s36, 5"); A("s_add_u32 s47, s47, s37"); A("s_lshl_b32 s47, s47, 2"); A("s_add_u32 s47, s47, s40")
    A("v_and_b32 v8, 31, v0"); A("s_lshl_b32 s60, s47, 8"); A("v_lshl_add_u32 v2, v8, 3, s60"); A("s_lshl_b32 s60, s47, 1"); A("v_mov_b32 v3, s60")
    A("s_lshl_b32 s44, s38, 1"); A("s_add_u32 s44, s44, s42")
    A("s_lshl_b32 s45, s44, 1"); A("s_add_u32 s45, s45, s43"); A("s_lshl_b32 s45, s45, 10")
    A("v_lshl_add_u32 v4, v0, 4, s45")
    A("s_waitcnt lgkmcnt(0)")
    if opt.get("stamps"): A("s_mov_b32 s80, s96")
    epoch(A)
    vm.issue("global_load_ushort v180, v3, s[26:27]", "par")
    for a in range(6): vm.issue(f"global_load_dwordx2 {vr(RAW+2*a,2)}, v2, s[{14+2*a}:{15+2*a}]", "par")
    vm.issue("global_load_dwordx4 v[12:15], v4, s[8:9]", "wphi")
    if not not opt.get("codepf"):
        A("s_getpc_b64 s[62:63]")
        A("k_pc:")
        A("s_and_b32 s61, s37, 7"); A("s_lshl_b32 s61, s61, 5"); A("v_add_u32 v7, s61, v8"); A("v_lshlrev_b32 v7, 7, v7")
        A("v_min_u32 v7, k_last-k_pc-4, v7")
        vm.issue("global_load_dword v181, v7, s[62:63]", "code")
    srd(A, 56, 34, WS_SIZE); A(f"s_mov_b32 s72, {OOB}")
    A("s_lshl_b32 s73, s38, 2"); A("s_add_u32 s73, s73, s40"); A("s_lshl_b32 s73, s73, 4")
    A("v_lshrrev_b32 v9, 5, v0")
    A("v_lshlrev_b32 v10, 2, v9"); A("v_sub_u32 v10, v8, v10")
    A("v_mov_b32 v11, 0x3f80"); A("v_mov_b32 v7, 0x3f800000")
    for t in range(2):
        for wd in range(4):
            c0 = 16 * t + 8 * (wd >> 1) + 2 * (wd & 1); d = ID + 4 * t + wd
            A(f"v_cmp_eq_u32 vcc, {c0}, v10"); A(f"v_cmp_eq_u32 s[48:49], {c0+1}, v10")
            A(f"v_cndmask_b32 v{d}, 0, v11, vcc"); A(f"v_cndmask_b32 v{d}, v{d}, v7, s[48:49]")
    A("s_lshl_b32 s46, s43, 13")
    A("v_bfe_u32 v10, v8, 1, 3"); A("v_xor_b32 v10, v10, v9"); A("v_lshl_add_u32 v11, v8, 7, s46")
    for t in range(4):
        A(f"v_xor_b32 v7, {2*t}, v10"); A(f"v_lshl_add_u32 v{2+t}, v7, 4, v11")
    A("v_bfe_u32 v10, v0, 2, 2")
    A("v_lshrrev_b32 v11, 1, v10"); A("v_xor_b32 v11, s42, v11")
    A("v_lshl_add_u32 v7, v9, 3, v10"); A("v_lshlrev_b32 v7, 7, v7"); A("v_lshl_add_u32 v7, v11, 6, v7")
    A("v_bfe_u32 v11, v0, 4, 1"); A("v_lshlrev_b32 v1, 5, v11"); A("v_and_b32 v11, 3, v0"); A("v_lshl_add_u32 v1, v11, 3, v1")
    A("v_add_u32 v7, v7, v1"); A(f"v_add_u32 v6, {WOFF}, v7")
    A("v_lshl_add_u32 v10, v9, 2, v10"); A("v_lshl_add_u32 v1, v10, 6, v1")
    A("s_lshl_b32 s60, s42, 11"); A(f"s_add_u32 s60, s60, {WPHI_L}"); A("v_add_u32 v1, s60, v1")
    HF = "s[70:71]"
    A(f"v_cmp_eq_u32 {HF}, 1, v9")
    DT, AR, AI, t0, t1 = 182, 184, 185, 186, 187
    W1, W256, W2, W4, W8, W32, W40, E4, CC, GA, GB, GC, GD, WQ, LA, LC = range(188, 220, 2)
    KD = 224; AF = [240, 32]; DH = [112, 128]; DL = [144, 16]
    for r in range(16): A(f"v_mov_b32 v{KD+r}, 0")
    for r in range(32, 96): A(f"v_mov_b32 v{ACC+r}, 0")
    A("s_lshl_b32 s60, s42, 1"); A("s_add_u32 s60, s60, s43"); A("s_lshl_b32 s60, s60, 10"); A(f"s_add_u32 s60, s60, {WPHI_L}")
    A("v_lshl_add_u32 v10, v0, 4, s60")
    A("s_lshl_b32 s60, s40, 12"); A(f"s_add_u32 s60, s60, {KD_L}"); A("v_lshl_add_u32 v11, v0, 4, s60")
    A("s_mul_i32 s47, s43, 0x80008000")
    vm.need("par")
    lg.drain()
    stamp(A, opt, 1)
    if opt.get("dly_g"): A(f"s_sleep {opt['dly_g']}")
    A("v_lshlrev_b32 v180, 16, v180"); A(f"s_mov_b32 s75, {hex(LOG2E)}")
    A(f"v_mul_f32 v{t0}, s75, v180"); A(f"v_fma_f32 v{t1}, v180, s75, -v{t0}"); A(f"v_fmac_f32 v{t1}, 0x32a57060, v180")
    A(f"v_exp_f32 v{t0}, v{t0}"); A(f"v_mul_f32 v{t1}, 0x3f317218, v{t1}"); A(f"v_fma_f32 v{t0}, v{t0}, v{t1}, v{t0}")
    A(f"v_cvt_pk_bf16_f32 v{DT}, v{t0}, v{t0}"); A(f"v_lshlrev_b32 v{DT}, 16, v{DT}")
    pc = opt.get("plainc")
    pk = (lambda t: unpk(t)) if pc else (lambda t: [t])
    cm = lambda r, z, w: [x.split("\n") for x in cmul(r, z, w, pc)]
    post = []
    for s in range(4):
        post += [f"v_cvt_pk_bf16_f32 v{DH[0]+4*s+i}, v{DH[0]+4*s+i}, v{DH[1]+4*s+i}" for i in range(4)]
        post += [f"v_cvt_pk_bf16_f32 v{DL[0]+4*s+i}, v{DL[0]+4*s+i}, v{DL[1]+4*s+i}" for i in range(4)]
        if s: post.insert(len(post) - 6, mf(KD, DH[0] + 4 * s - 4, DL[0] + 4 * s - 4, False))
    lastk = mf(KD, DH[0] + 12, DL[0] + 12, False)
    tm = lambda t: [mf(d, AF[t] + 4 * i, ID + 4 * t, t == 0) for i, d in enumerate((DH[0], DH[1], DL[0], DL[1]))]
    A("s_mov_b32 s50, 0")
    A("k_kgen:")
    pre = [f"v_lshlrev_b32 v{d}, 16, v{RAW+2*a}" for d, a in [(AR, 0), (AI, 1), (GA, 2), (GA + 1, 3), (GB, 4), (GB + 1, 5)]]
    pre += [f"v_mul_f32 v{AR}, v{AR}, v{DT}", f"v_mul_f32 v{AI}, v{AI}, v{DT}", f"v_mul_f32 v{AR}, {hex(LOG2E)}, v{AR}", f"v_mul_f32 v{AI}, {hex(INV2PI)}, v{AI}"]
    sh = []
    for a in range(6): sh += [f"v_alignbit_b32 v{RAW+2*a}, v{RAW+2*a+1}, v{RAW+2*a}, 16", f"v_lshrrev_b32 v{RAW+2*a+1}, 16, v{RAW+2*a+1}"]
    pre += [f"v_exp_f32 v{t0}, v{AR}", f"v_fract_f32 v{t1}, v{AI}", f"v_cos_f32 v{W1}, v{t1}", f"v_sin_f32 v{W1+1}, v{t1}"] + sh[:2]
    pre += [f"v_mul_f32 v{W1}, v{W1}, v{t0}", f"v_mul_f32 v{W1+1}, v{W1+1}, v{t0}",
            f"v_mul_f32 v{t0}, 0x43800000, v{AR}", f"v_mul_f32 v{t1}, 0x43800000, v{AI}",
            f"v_exp_f32 v{t0}, v{t0}", f"v_fract_f32 v{t1}, v{t1}", f"v_cos_f32 v{W256}, v{t1}", f"v_sin_f32 v{W256+1}, v{t1}"] + sh[2:4]
    pre += [f"v_mul_f32 v{W256}, v{W256}, v{t0}", f"v_mul_f32 v{W256+1}, v{W256+1}, v{t0}"] + sh[4:]
    for r in range(16): pass
    weave(A, pre[:30], tm(1))
    for x in pre[30:]: A(x)
    A("s_cmp_eq_u32 s50, 0"); A("s_cbranch_scc1 k_kfirst")
    for x in post: A(x)
    A("s_nop 1"); A(lastk)
    A("k_kfirst:")
    def two(c1, c2):
        for x in c1[0] + c2[0] + c1[1] + c2[1]: A(x)
    def one(c1, fill):
        for x in c1[0] + fill[:1] + c1[1] + fill[1:]: A(x)
    two(cm(W2, W1, W1), cm(CC, GA, GB))
    one(cm(W4, W2, W2), [f"v_mul_f32 v{CC}, v{CC}, v{DT}", f"v_mul_f32 v{CC+1}, v{CC+1}, v{DT}"])
    one(cm(W8, W4, W4), [f"v_cndmask_b32 v{E4}, 1.0, v{W4}, {HF}", f"v_cndmask_b32 v{E4+1}, 0, v{W4+1}, {HF}"])
    two(cm(W40, W8, W8), cm(GA, CC, E4))
    two(cm(W32, W40, W40), cm(GB, GA, W1))
    two(cm(W40, W32, W8), cm(GC, GB, W1))
    A(f"v_cndmask_b32 v{LA}, 1.0, v{W32}, {HF}"); A(f"v_cndmask_b32 v{LA+1}, 0, v{W32+1}, {HF}")
    hi = [None, None, None, (GD, GC, W1), (GB, GA, W256), (GC, GB, W2), (GD, GC, W2), (WQ, W256, E4),
          (GA, GB, W256), (GC, GA, W4), (GB, GA, W256), (GD, GB, W4), (GA, GB, WQ), (GC, GA, W256), (GB, GC, W256), (GD, GB, W256)]
    hreg = [GA, GB, GC, GD, GB, GC, GD, GD, GA, GC, GB, GD, GA, GC, GB, GD]
    def hpack(k):
        x, y = hreg[k - 1], hreg[k]; wd = AF[k >> 3] + ((k >> 1) & 3)
        return [f"v_cvt_pk_bf16_f32 v{wd}, v{x}, v{y}", f"v_cvt_pk_bf16_f32 v{wd+4}, -v{x+1}, -v{y+1}"]
    def lpack(k):
        wd = AF[k >> 3] + ((k >> 1) & 3)
        return [f"v_cvt_pk_bf16_f32 v{wd+8}, v{LA}, v{LC}", f"v_cvt_pk_bf16_f32 v{wd+12}, v{LA+1}, v{LC+1}"]
    for x in hpack(1): A(x)
    pendm = []
    for k in range(1, 16):
        cl_ = cm(LC, LA, W8) if k & 1 else cm(LA, LC, W8 if k & 3 else W40)
        if hi[k] is None: one(cl_, ["s_nop 0"] if not pc else [])
        else: two(cm(*hi[k]), cl_)
        if k & 1:
            P_ = (hpack(k) if k > 1 else ["s_nop 0"]) + lpack(k)
            if k >= 9: A(tm(0)[(k - 9) >> 1])
            for x in P_: A(x)
    A("s_add_u32 s50, s50, 1"); A("s_cmp_lt_u32 s50, 4")
    A("s_cbranch_scc1 k_kgen")
    vm.need("wphi")
    x = tm(1); A(x[0]); A(x[1])
    lg.issue("ds_write_b128 v10, v[12:15]")
    A(x[2]); A(x[3]); A("s_add_u32 s53, s53, 1")
    for x in post: A(x)
    A("s_nop 1"); A(lastk)
    for r in range(32): A(f"v_mov_b32 v{ACC+r}, 0")
    for i in range(4): lg.issue(f"ds_write_b128 v11, {vr(KD+4*i,4)} offset:{1024*i}")
    stamp(A, opt, 13)
    lg.drain()

    def reads(fs, t):
        b = F[fs]
        def W(g): return [(f"ds_read_b64_tr_b16 {vr(b+8+4*g+2*j,2)}, v6 offset:{t*6144+g*2048+j*512}", ("w", fs, g)) for j in range(2)]
        return [(f"ds_read_b128 {vr(b,4)}, v{2+t}", ("x", fs, 0))] + W(0) + [(f"ds_read_b128 {vr(b+4,4)}, v{2+t} offset:4096", ("x", fs, 1))] + W(1) + W(2)

    def mfs(fs):
        R = []
        for i in range(6):
            b = F[fs]; g = i // 2; blk = i % 2; a = ACC + 16 * i
            X = vr(b + 4 * blk, 4); Wf = vr(b + 8 + 4 * g, 4)
            R.append((f"{MF32} {vr(a,16)}, " + (f"{Wf}, {X}" if g < 2 else f"{X}, {Wf}") + f", {vr(a,16)}", {("x", fs, blk), ("w", fs, g)}))
        return R
    A("s_mov_b32 s50, 0"); A("s_mov_b32 s51, 0")
    A("s_barrier")
    stamp(A, opt, 2)
    if opt.get("stamps"): A("s_memtime s[98:99]"); A("s_waitcnt lgkmcnt(0)")
    for t in range(2):
        for j in range(2):
            lg.issue(f"ds_read_b64_tr_b16 {vr(WP+4*t+2*j,2)}, v1 offset:{(16*t+8*j)*64}", "wp")
    for r, tg in reads(0, 0): lg.issue(r, tg)
    lg.need("wp")
    for i in range(8): A(f"v_xor_b32 v{WP+i}, s47, v{WP+i}")
    q0 = list(lg.q)
    slots = [2, 2, 2, 2, 0, 0]
    A("k_gloop:")
    for t in range(4):
        fs = t & 1; R = reads(fs ^ 1, (t + 1) & 3); M = mfs(fs); ri = 0; last = (t == 3)
        if last:
            A("s_add_u32 s51, s51, 1"); A(f"s_mov_b32 s52, {STAGE}"); A("s_cmp_eq_u32 s51, 3")
            A(f"s_cselect_b32 s52, {(-2*STAGE)&0xffffffff}, s52"); A("s_cselect_b32 s51, 0, s51")
        for i, (m, tags) in enumerate(M):
            lg.need(tags); A(m)
            if last and i == 0:
                A("v_add_u32 v2, s52, v2"); A("v_add_u32 v6, s52, v6")
            for k in range(slots[i]): lg.issue(*R[ri]); ri += 1
            if last and i == 4:
                for a in (3, 4, 5): A(f"v_add_u32 v{a}, s52, v{a}")
                A("s_add_u32 s50, s50, 1"); A(f"s_cmp_lt_u32 s50, {NST}")
            if t == 2 and i == 4: A(f"s_cmp_eq_u32 s50, {NST-1}")
            if t == 2 and i == 5:
                lg.drain(); A("s_cbranch_scc1 k_nobar"); A("s_barrier"); A("k_nobar:")
    vm.q = []
    assert lg.q == q0
    A("s_cbranch_scc1 k_gloop")
    lg.drain()
    stamp(A, opt, 3)
    if opt.get("stamps"): A("s_memtime s[96:97]"); A("s_waitcnt lgkmcnt(0)"); A("s_sub_u32 s95, s96, s98")
    Q, K, V = ACC, ACC + 32, ACC + 64
    KB = 112; VB = 128; PK = [168, 184]; EN = [200, 216]; T = [232, 236]; ONES = 8
    if opt.get("dly_t"): A(f"s_sleep {opt['dly_t']}")
    if opt.get("gp", 1): A(f"s_setprio {opt.get('gp', 1)}")
    lds_add(A, 3)
    A(f"s_mov_b32 s54, {hex(LOG2E)}"); A(f"s_mov_b32 s55, {hex(LOG2E)}")
    for x in cvt(KB, K): A(x)
    x = cvt(KB + 8, K + 16)
    A(x[0]); A(mf(PK[0], WP, KB, True))
    for y in x[1:]: A(y)
    A(mf(PK[0], WP + 4, KB + 4, False))
    x = cvt(VB, V) + cvt(VB + 8, V + 16)
    weave(A, x, [mf(PK[1], WP, KB + 8, True), mf(PK[1], WP + 4, KB + 12, False)])
    for i in range(4): A(f"v_mov_b32 v{ONES+i}, 0x3f803f80")
    A(f"s_mul_i32 s60, s40, 4352"); A(f"s_add_u32 s60, s60, {X_L}")
    A("s_xor_b32 s61, s40, 2"); A(f"s_mul_i32 s61, s61, 4352"); A(f"s_add_u32 s61, s61, {X_L}")
    PH = [48, 64]; KV = [80, 96]; TA = [112, 48]; Z = [168, 200]
    st0, fin0 = softmax_parts(PK[0], EN[0], T[0], PH[0], PH[0] + 8, 54, plain)
    st1, fin1 = softmax_parts(PK[1], EN[1], T[1], PH[1], PH[1] + 8, 54, plain)
    zipper(A, st0, st1)
    TD = [[PK[0], EN[0]], [PK[1], EN[1]]]
    half = len(fin0) // 2
    trn = lambda b, s: [mf(TD[b][s], PH[b] + 8 * s + 4 * t, ID + 4 * t, t == 0) for t in range(2)]
    kvm = lambda b, s: [mf(KV[s], TA[b] + 8 * s + 4 * t, VB + 8 * b + 4 * t, b == 0 and t == 0) for t in range(2)]
    zm = lambda b, s: [mf(Z[s], ONES, TA[b] + 8 * s + 4 * t, b == 0 and t == 0) for t in range(2)]
    for y in fin0[:half]: A(y)
    weave(A, fin0[half:], trn(0, 1), 2)
    weave(A, fin1[:half], trn(0, 0), 2)
    weave(A, fin1[half:], trn(1, 1), 2)
    weave(A, cvt(TA[0] + 8, TD[0][1]) + cvt(TA[0], TD[0][0]), trn(1, 0), 2)
    weave(A, cvt(TA[1] + 8, TD[1][1]), kvm(0, 1))
    adr = ["v_lshl_add_u32 v12, v0, 4, s60", "v_lshl_add_u32 v13, v0, 4, s61", "v_lshl_add_u32 v14, v0, 2, s60", "v_lshl_add_u32 v15, v0, 2, s61",
           "v_lshlrev_b32 v5, 4, v0", "v_lshlrev_b32 v6, 2, v0", "v_cmp_gt_u32 vcc, 32, v0", f"v_mov_b32 v4, {OOB}", "s_nop 0", "v_cndmask_b32 v4, v4, v6, vcc"]
    weave(A, cvt(TA[1], TD[1][0]) + adr, kvm(1, 1) + zm(0, 1))
    for y in zm(1, 1) + kvm(0, 0): A(y)
    A("s_lshl_b32 s62, s42, 2"); A(f"s_add_u32 s62, s62, {CNT_L}")
    A("s_add_u32 s67, s73, s39")
    A("s_lshl_b32 s74, s67, 11"); A(f"s_add_u32 s74, s74, {WS_KVP}"); A("s_lshl_b32 s75, s67, 7"); A(f"s_add_u32 s75, s75, {WS_ZP}")
    rest = kvm(1, 0) + zm(0, 0) + zm(1, 0)
    for i in range(4):
        lg.issue(f"ds_write_b128 v12, {vr(KV[1]+4*i,4)} offset:{1024*i}")
        A(rest[i])
    lg.issue(f"ds_write_b32 v14, v{Z[1]} offset:4096")
    for y in rest[4:]: A(y)
    lg.drain()
    lds_add(A, "s62")
    lds_wait(A, "k_spinA", "s62", 2)
    for i in range(4): lg.issue(f"ds_read_b128 {vr(KV[1]+4*i,4)}, v13 offset:{1024*i}", i)
    lg.issue(f"ds_read_b32 v{Z[1]}, v15 offset:4096", "z")
    PB = 128
    for i in range(4):
        lg.need(i)
        for j in range(4): A(f"v_add_f32 v{KV[0]+4*i+j}, v{KV[0]+4*i+j}, v{KV[1]+4*i+j}")
        for j in range(2): A(f"v_cvt_pk_bf16_f32 v{PB+2*i+j}, v{KV[0]+4*i+2*j}, v{KV[0]+4*i+2*j+1}")
        if i & 1: vm.issue(f"buffer_store_dwordx4 {vr(PB+4*(i>>1),4)}, v5, s[56:59], s74 offen offset:{1024*(i>>1)} sc1")
    lg.need("z")
    A(f"v_add_f32 v2, v{Z[0]}, v{Z[1]}")
    vm.issue("buffer_store_dword v2, v4, s[56:59], s75 offen sc1")
    stamp(A, opt, 4)
    rel = opt.get("rel", 1)
    if rel == 0: lds_add(A, 2)
    QB = 112; PQ = [168, 184]; PHQ = [16, 32]
    for y in cvt(QB, Q): A(y)
    weave(A, cvt(QB + 8, Q + 16), [mf(PQ[0], WP, QB, True), mf(PQ[0], WP + 4, QB + 4, False)], 1)
    A(mf(PQ[1], WP, QB + 8, True)); A(mf(PQ[1], WP + 4, QB + 12, False))
    IDC = 64
    for i in range(8): A(f"v_mov_b32 v{IDC+i}, v{ID+i}")
    A("s_lshl_b32 s75, s73, 7"); A(f"s_add_u32 s75, s75, {WS_ZP}")
    A("s_lshl_b32 s76, s73, 7"); A(f"s_add_u32 s76, s76, {WS_FK}"); A("s_lshl_b32 s77, s39, 7"); A("s_add_u32 s77, s77, s76")
    st0, fin0 = softmax_parts(PQ[0], EN[0], T[0], PHQ[0], PHQ[0] + 8, 54, plain or opt.get("plainq"))
    st1, fin1 = softmax_parts(PQ[1], EN[1], T[1], PHQ[1], PHQ[1] + 8, 54, plain or opt.get("plainq"))
    cut = opt.get("sigat", 20)
    zipper(A, st0[:cut], st1[:cut])
    vm.drain(); signal(A, vm, "s77", 5, 72)
    stamp(A, opt, 14)
    zipper(A, st0[cut:], st1[cut:]); zipper(A, fin0, fin1)
    A("v_and_b32 v2, 15, v0"); A("v_lshlrev_b32 v2, 7, v2")
    if rel == 1: lds_add(A, 2)
    A("v_and_b32 v8, 31, v0"); A("v_lshrrev_b32 v9, 4, v8"); A("v_lshlrev_b32 v9, 5, v9")
    A("v_bfe_u32 v10, v8, 2, 1"); A("v_lshl_add_u32 v9, v10, 4, v9"); A("v_bfe_u32 v10, v8, 3, 1"); A("v_lshl_add_u32 v9, v10, 3, v9")
    A("v_and_b32 v10, 3, v8"); A("v_lshl_add_u32 v9, v10, 1, v9")
    A("s_lshl_b32 s70, s42, 7"); A(f"s_add_u32 s70, s70, {X_L+8192}"); A("s_lshl_b32 s71, s43, 6"); A("s_add_u32 s71, s71, s70"); A("v_add_u32 v9, s71, v9")
    A("v_lshrrev_b32 v11, 5, v0"); A("v_lshl_add_u32 v10, v11, 4, s71"); A("v_xor_b32 v11, 64, v10")
    A("s_lshl_b32 s71, s40, 11"); A(f"s_add_u32 s71, s71, {X_L}"); A("v_add_u32 v12, s71, v5")
    A("s_xor_b32 s71, s40, 2"); A("s_lshl_b32 s71, s71, 11"); A(f"s_add_u32 s71, s71, {X_L}"); A("v_add_u32 v13, s71, v5")
    A("s_lshl_b32 s74, s73, 11"); A(f"s_add_u32 s74, s74, {WS_KVP}")
    stamp(A, opt, 5)
    LD = 112; ZL = 48; RED = 80
    gpoll(A, "k_poll", "buffer_load_dword v4, v2, s[56:59], s76 offen sc1", 4, "v_cmp_ne_u32 vcc, s53, v4", opt.get("sleep", 2), 100 if opt.get("stamps") else None)
    vm.q = []
    stamp(A, opt, 6)
    for i in range(8): vm.issue(f"buffer_load_dword v{ZL+i}, v6, s[56:59], s75 offen offset:{256*i} sc1", ("z", i))
    for r in range(16):
        if not r & 1:
            A(f"s_add_u32 s60, s39, {r>>1}"); A("s_and_b32 s60, s60, 7"); A("s_lshl_b32 s60, s60, 12"); A("s_add_u32 s60, s60, s74")
        for i in range(2):
            vm.issue(f"buffer_load_dwordx4 {vr(LD+8*r+4*i,4)}, v5, s[56:59], s60 offen offset:{(r&1)*2048+1024*i} sc1", (r, i))
    vm.need(("z", 7))
    for i in range(0, 8, 2): A(f"v_add_f32 v{ZL+i}, v{ZL+i}, v{ZL+i+1}")
    A(f"v_add_f32 v{ZL}, v{ZL}, v{ZL+2}"); A(f"v_add_f32 v{ZL+4}, v{ZL+4}, v{ZL+6}"); A(f"v_add_f32 v{ZL}, v{ZL}, v{ZL+4}")
    A(f"v_mov_b32 v{ZL+1}, v{ZL}"); A(f"v_permlane32_swap_b32 v{ZL}, v{ZL+1}"); A(f"v_add_f32 v{ZL}, v{ZL}, v{ZL+1}")
    A(f"v_cvt_pk_bf16_f32 v{ZL}, v{ZL}, v{ZL}")
    lg.issue(f"ds_write_b16 v9, v{ZL}")
    for r in range(16):
        for i in range(2):
            vm.need((r, i))
            x = LD + 8 * r + 4 * i
            A(mf(RED, IDC + 4 * i, x, r == 0 and i == 0))

    lds_add(A, 7)
    stamp(A, opt, 7)
    KF = 96; ZF = 112; NUM = [144, 160]; DEN = [176, 192]; OB = 208
    A("s_lshl_b32 s70, s39, 1"); A("s_add_u32 s70, s70, s43"); A("s_lshl_b32 s70, s70, 17"); A("s_lshl_b32 s71, s44, 11")
    A("s_add_u32 s70, s70, s71"); A(f"s_add_u32 s70, s70, {WS_O}"); A("s_add_u32 s71, s70, 65536")
    for y in cvt(KF, RED): A(y)
    for i in range(2): lg.issue(f"ds_write_b128 v12, {vr(KF+4*i,4)} offset:{1024*i}")
    for t in range(2):
        for b in range(2): A(mf(NUM[b], KF + 4 * t, PHQ[b] + 4 * t, t == 0))
    lg.drain()
    lds_add(A, "s62")
    lds_wait(A, "k_spinC", "s62", 4)
    for s in range(2):
        for t in range(2): lg.issue(f"ds_read_b128 {vr(ZF+8*s+4*t,4)}, v{10+s} offset:{32*t}", ("z", s, t))
    for t in range(2): lg.issue(f"ds_read_b128 {vr(KF+8+4*t,4)}, v13 offset:{1024*t}", ("k", t))
    for s in range(2):
        for t in range(2):
            lg.need(("z", s, t))
            for b in range(2): A(mf(DEN[b], ZF + 8 * s + 4 * t, PHQ[b] + 8 * s + 4 * t, s == 0 and t == 0))
    for b in range(2):
        for t in range(2):
            lg.need(("k", t))
            A(mf(NUM[b], KF + 8 + 4 * t, PHQ[b] + 8 + 4 * t, False))
    for b in range(2):
        A(f"v_add_f32 v{DEN[b]}, 0x358637bd, v{DEN[b]}"); A(f"v_rcp_f32 v{DEN[b]}, v{DEN[b]}")
    A("s_lshl_b32 s74, s43, 12"); A(f"s_add_u32 s74, s74, {WS_FO}")
    A("s_lshl_b32 s75, s39, 13"); A("s_add_u32 s75, s75, s74"); A("s_lshl_b32 s76, s44, 7"); A("s_add_u32 s75, s75, s76")
    A("s_lshl_b32 s76, s68, 13"); A("s_add_u32 s76, s76, s74")
    A("v_lshrrev_b32 v8, 5, v0"); A("v_bfe_u32 v9, v0, 2, 2"); A("v_lshl_add_u32 v10, v8, 2, v9"); A("v_lshlrev_b32 v10, 7, v10")
    for b in range(2):
        for i in range(16): A(f"v_mul_f32 v{NUM[b]+i}, v{NUM[b]+i}, v{DEN[b]}")
        for y in cvt(OB + 8 * b, NUM[b]): A(y)
        for t in range(2): vm.issue(f"buffer_store_dwordx4 {vr(OB+8*b+4*t,4)}, v5, s[56:59], s{70+b} offen offset:{1024*t} sc1")
    stamp(A, opt, 8)
    A("v_and_b32 v11, 1, v0"); A("v_lshl_add_u32 v10, v11, 5, v10"); A("v_bfe_u32 v11, v0, 4, 1"); A("v_lshl_add_u32 v10, v11, 4, v10")
    A("v_bfe_u32 v11, v0, 1, 1"); A("v_lshl_add_u32 v10, v11, 3, v10")
    A("v_lshrrev_b32 v9, 1, v9"); A("v_lshl_add_u32 v10, v9, 6, v10"); A("v_xor_b32 v11, 64, v10")
    for k in range(1, 3): A(f"v_add_u32 v{10+2*k}, {65536*k}, v10"); A(f"v_add_u32 v{11+2*k}, {65536*k}, v11")
    A("v_and_b32 v4, 31, v0"); A("v_lshlrev_b32 v4, 7, v4")
    A("s_lshl_b32 s77, s68, 2"); A("s_add_u32 s77, s77, s40"); A("s_lshl_b32 s77, s77, 16"); A(f"s_add_u32 s77, s77, {WS_O}")
    vm.drain()
    signal(A, vm, "s75", 5, 72)
    stamp(A, opt, 9)
    lds_wait(A, "k_wo1", 4, 4)
    gpoll(A, "k_opoll", "buffer_load_dword v9, v4, s[56:59], s76 offen sc1", 9, "v_cmp_ne_u32 vcc, s53, v9", opt.get("sleep2", 2), 101 if opt.get("stamps") else None)
    vm.q = []
    A("s_or_b32 s60, s2, s40"); A("s_cmp_eq_u32 s60, 0"); A(f"s_cselect_b32 s60, {WS_EP}, s72")
    A("v_mov_b32 v2, 0"); A("v_mov_b32 v3, s53"); A("s_mov_b64 exec, 1")
    vm.issue("buffer_store_dword v3, v2, s[56:59], s60 offen", "ep"); A("s_mov_b64 exec, -1")
    stamp(A, opt, 10)
    if opt.get("stamps"): A("s_memtime s[98:99]"); A("s_waitcnt lgkmcnt(0)")
    ACC2 = [16, 32]; WF = [48, 56, 64]; OF = 72; D = opt.get("look", 16); RING = D + 2

    def oload(p_):
        if p_ & 3 == 0:
            A(f"s_add_u32 s60, s69, {p_>>2}"); A("s_and_b32 s60, s60, 15"); A("s_lshl_b32 s60, s60, 12"); A("s_add_u32 s60, s60, s77")
        vm.issue(f"buffer_load_dwordx4 {vr(OF+4*(p_%RING),4)}, v5, s[56:59], s60 offen offset:{1024*(p_&3)} sc1", ("o", p_))

    def wreads(p_):
        base = UNIT[p_ >> 2] + 2048 * (p_ & 3); fs = p_ % 3
        for nb in range(2):
            for j in range(2):
                a = base + 1024 * j
                lg.issue(f"ds_read_b64_tr_b16 {vr(WF[fs]+4*nb+2*j,2)}, v{10+2*(a>>16)+nb} offset:{a&65535}", ("w", fs, nb))
    for p_ in range(D): oload(p_)
    wreads(0); wreads(1)
    for p_ in range(64):
        fs = p_ % 3
        if opt.get("g2st") and p_ in (0, 1, 16, 32): stamp(A, opt, {0: 1, 1: 2, 16: 3, 32: 4}[p_])
        if p_ + 2 == 44:
            if opt.get("g2st"): stamp(A, opt, 5)
            lg.drain(); lds_wait(A, "k_wo2", 5, 4)
            if opt.get("g2st"): stamp(A, opt, 6)
        if p_ + D == 64 and opt.get('ygate', 1): lg.drain(); lds_add(A, 8)
        if p_ < 62: wreads(p_ + 2)
        vm.need(("o", p_))
        for nb in range(2):
            lg.need(("w", fs, nb))
            A(mf(ACC2[nb], WF[fs] + 4 * nb, OF + 4 * (p_ % RING), p_ == 0))
            if nb == 0 and p_ + D < 64: oload(p_ + D)
    stamp(A, opt, 11)
    if opt.get("g2st"): A("s_memtime s[96:97]"); A("s_waitcnt lgkmcnt(0)"); A("s_sub_u32 s95, s96, s98")
    srd(A, 4, 30, 0x800000)
    A("s_lshl_b32 s64, s40, 12"); A(f"s_add_u32 s64, s64, {X_L}")
    A("v_and_b32 v13, 31, v0"); A("v_lshl_add_u32 v14, v13, 7, s64"); A("v_and_b32 v13, 7, v13"); A("v_lshlrev_b32 v15, 1, v8"); A("v_xor_b32 v13, v13, v15")
    A("v_lshrrev_b32 v1, 3, v0"); A("v_and_b32 v2, 7, v0")
    for nb in range(2):
        for y in cvt(64 + 8 * nb, ACC2[nb]): A(y)
        for i in range(2):
            A(f"v_xor_b32 v15, {4*nb+i}, v13"); A("v_lshl_add_u32 v15, v15, 4, v14")
            lg.issue(f"ds_write_b128 v15, {vr(64+8*nb+4*i,4)}")
    A("v_xor_b32 v13, v1, v2"); A("v_lshlrev_b32 v13, 4, v13"); A("v_lshl_add_u32 v13, v1, 7, v13"); A("v_add_u32 v13, s64, v13")
    A("s_lshl_b32 s64, s68, 19"); A("s_lshl_b32 s65, s40, 17"); A("s_add_u32 s64, s64, s65"); A("s_lshl_b32 s65, s69, 7"); A("s_add_u32 s64, s64, s65")
    A("v_lshlrev_b32 v14, 12, v1"); A("v_lshl_add_u32 v14, v2, 4, v14")
    lg.drain()
    for k in range(4): lg.issue(f"ds_read_b128 {vr(80+4*k,4)}, v13 offset:{1024*k}", k)
    om = {0: "", 1: " sc1", 2: " nt", 3: " sc0 sc1"}[opt.get("ost", 0)]
    for k in range(4):
        lg.need(k)
        A(f"buffer_store_dwordx4 {vr(80+4*k,4)}, v14, s[4:7], s64 offen" + om)
        if k < 3: A("s_add_u32 s64, s64, 32768")
    if opt.get("stamps"):
        A("s_waitcnt vmcnt(0)"); stamp(A, opt, 12); write_stamps(A)
    A("s_endpgm")


def first_use(order, k):
    n = sum(order[k])
    return all(sum(o) != n for o in order[:k])


def part_s(A, opt):
    lg = Cnt(A, "lgkmcnt"); vm = Cnt(A, "vmcnt")
    A("s_sub_u32 s41, s40, 4")
    A("v_lshrrev_b32 v1, 3, v0"); A("s_lshl_b32 s42, s41, 5"); A("v_add_u32 v5, s42, v1"); A("v_lshlrev_b32 v5, 11, v5")
    A("v_and_b32 v2, 7, v0"); A("v_lshrrev_b32 v3, 4, v0")
    for i in range(4):
        A(f"v_xor_b32 v4, {4*(i&1)}, v3"); A("v_xor_b32 v4, v4, v2"); A("v_lshl_add_u32 v4, v4, 4, v5")
        A(f"v_add_u32 v{8+i}, {16384*i-1024*i}, v4")
    A("s_lshl_b32 s42, s41, 4"); A("v_add_u32 v19, s42, v1"); A("v_mul_u32_u24 v5, 6144, v19"); A("s_lshl_b32 s42, s38, 7"); A("v_add_u32 v5, s42, v5")
    A("v_bfe_u32 v3, v0, 4, 1"); A("v_lshlrev_b32 v4, 2, v3"); A("v_xor_b32 v6, v4, v2"); A("v_lshl_add_u32 v4, v6, 4, v5")
    for half in range(2):
        for g in range(3):
            idx = 2 * g + half
            A(f"v_add_u32 v{12+idx}, {half*8*6144+g*2048-1024*(idx&3)}, v4")
    A("s_lshl_b32 s43, s41, 12"); A("s_mul_i32 s44, s41, 6144"); A(f"s_add_u32 s44, s44, {WOFF}")
    A("s_lshr_b32 s45, s37, 2"); A("s_add_u32 s45, s45, s37")
    A("s_lshl_b32 s46, s39, 18")
    A("s_waitcnt lgkmcnt(0)")
    if opt.get("stamps"): A("s_mov_b32 s80, s96")
    srd(A, 48, 4, 0x40000, add="s46"); srd(A, 64, 6, 0x600000)

    def issue(i):
        buf = (i % 3) * STAGE
        P = opt.get("P", 4)
        A(f"s_add_u32 s60, s45, {i&(P-1)}"); A(f"s_and_b32 s60, s60, {P-1}")
        if i & (16 - P): A(f"s_or_b32 s60, s60, {i&(16-P)}")
        A("s_lshl_b32 s61, s60, 7"); A(f"s_mul_i32 s62, s60, {64*6144}")
        A(f"s_add_u32 m0, s43, {buf}")
        for k in range(4): vm.issue(f"buffer_load_dwordx4 v{8+k}, s[48:51], s61 offen offset:{1024*k} lds", ("st", i))
        A(f"s_add_u32 m0, s44, {buf}")
        for k in range(4): vm.issue(f"buffer_load_dwordx4 v{12+k}, s[64:67], s62 offen offset:{1024*k} lds", ("st", i))
        A(f"s_add_u32 m0, s44, {buf+4096}")
        for k in range(2): vm.issue(f"buffer_load_dwordx4 v{16+k}, s[64:67], s62 offen offset:{1024*k} lds", ("st", i))

    if opt.get("dly_s"): A(f"s_sleep {opt['dly_s']}")
    issue(0)
    A("s_lshl_b32 s20, s69, 18"); A("s_lshl_b32 s71, s68, 7"); A("s_add_u32 s20, s20, s71"); A("s_lshl_b32 s71, s41, 16"); A("s_add_u32 s20, s20, s71")
    A("v_lshlrev_b32 v24, 11, v1"); A("v_lshl_add_u32 v24, v2, 4, v24")
    A("s_lshl_b32 s21, s41, 12"); A(f"s_add_u32 s21, s21, {UT_L}")
    srd(A, 24, 12, 0x400000); A("s_mov_b32 m0, s21")
    for k in range(4):
        vm.issue(f"buffer_load_dwordx4 v24, s[24:27], s20 offen offset:{1024*k} lds", "uin")
        if k < 3: A(f"s_add_u32 s20, s20, {16384-1024}")
    issue(1); issue(2)
    UIN = 128; KD = 108; HF = "s[72:73]"
    A("s_lshl_b32 s47, s36, 5"); A("s_add_u32 s47, s47, s37"); A("s_lshl_b32 s47, s47, 2"); A("s_add_u32 s47, s47, s41")
    A("v_and_b32 v18, 31, v0"); A("s_lshl_b32 s60, s47, 1"); A("v_mov_b32 v5, s60")
    vm.issue("global_load_ushort v22, v5, s[28:29]", "par")
    epoch(A)
    srd(A, 56, 34, WS_SIZE)
    A("v_lshrrev_b32 v39, 4, v0"); A("v_bfe_u32 v4, v0, 2, 2"); A("v_lshl_add_u32 v4, v39, 3, v4"); A("v_lshlrev_b32 v4, 7, v4")
    A("v_and_b32 v40, 3, v0"); A("v_lshl_add_u32 v4, v40, 3, v4"); A("v_add_u32 v25, s21, v4")
    A("v_and_b32 v4, 15, v0"); A("v_lshlrev_b32 v26, 12, v4"); A("v_lshl_add_u32 v26, v39, 4, v26")
    A("s_lshl_b32 s70, s68, 18"); A("s_lshl_b32 s71, s69, 8"); A("s_add_u32 s70, s70, s71"); A("s_lshl_b32 s71, s41, 6"); A("s_add_u32 s70, s70, s71")
    if WS_UT: A(f"s_add_u32 s70, s70, {WS_UT}")
    A("s_lshl_b32 s60, s2, 2"); A("s_add_u32 s60, s60, s41"); A("s_lshl_b32 s60, s60, 11"); A("v_lshl_add_u32 v35, v4, 7, s60")
    A("v_lshlrev_b32 v19, 11, v19"); A("v_lshl_add_u32 v19, v6, 4, v19"); A("s_lshl_b32 s42, s69, 7"); A("v_add_u32 v19, s42, v19"); A(f"v_add_u32 v20, {16384-1024}, v19")
    A(f"s_mul_i32 s74, s41, {TBL}"); A(f"s_add_u32 s74, s74, {TB_L}")
    A("s_mul_i32 s63, s41, 4608"); A(f"s_add_u32 s63, s63, {U_L}")
    A("v_lshrrev_b32 v3, 5, v0"); A(f"v_cmp_eq_u32 {HF}, 1, v3")
    A("v_cmp_eq_u32 vcc, 0, v0"); A("v_lshlrev_b32 v5, 4, v0")
    A("s_lshl_b32 s60, s41, 12"); A(f"s_add_u32 s60, s60, {KD_L}"); A("v_add_u32 v21, s60, v5")
    A("v_min_u32 v36, 29, v0"); A("v_lshl_add_u32 v36, v36, 4, s63"); A("v_add_u32 v37, s63, v5"); A("v_lshlrev_b32 v38, 7, v0")
    A("s_lshl_b32 s22, s68, 13"); A(f"s_add_u32 s22, s22, {WS_FU}"); A("s_lshl_b32 s23, s69, 2"); A("s_add_u32 s23, s23, s41"); A("s_lshl_b32 s23, s23, 7"); A("s_add_u32 s23, s23, s22")
    for i in range(4): A(f"v_mov_b32 v{28+i}, 0")
    srd(A, 8, 10, 0x200000); A("s_lshl_b32 s3, s41, 11")

    def wo_groups(gs, regs=None):
        for n, g in enumerate(gs):
            A(f"s_add_u32 s60, s69, {g}"); A("s_and_b32 s60, s60, 15"); A("s_lshl_b32 s60, s60, 17")
            if regs is None:
                A(f"s_add_u32 m0, s3, {UNIT[g]}")
                for j in range(2): vm.issue(f"buffer_load_dwordx4 v{19+j}, s[8:11], s60 offen offset:{1024*j} lds", ("wo", g))
            else:
                for j in range(2): vm.issue(f"buffer_load_dwordx4 {vr(regs+8*n+4*j,4)}, v{19+j}, s[8:11], s60 offen offset:{1024*j}", ("wo", g))

    A("s_waitcnt lgkmcnt(0)"); A("s_add_u32 s53, s53, 1")
    for i in range(4): A(f"v_mov_b32 v{40+i}, s53")
    vm.need("uin")
    for cq in range(4):
        for j in range(2): lg.issue(f"ds_read_b64_tr_b16 {vr(UIN+4*cq+2*j,2)}, v25 offset:{512*j+32*cq}", cq)
    for cq in range(4):
        lg.need(cq)
        vm.issue(f"buffer_store_dwordx4 {vr(UIN+4*cq,4)}, v26, s[56:59], s70 offen sc1", "uout")
        if cq < 3: A("s_add_u32 s70, s70, 65536")
    if not opt.get("nowot"): vm.issue("buffer_load_dword v23, v35, s[8:11], 0 offen", "wot")
    stamp(A, opt, 12, True)
    A("s_barrier")
    stamp(A, opt, 1, True)
    for i in range(4): lg.issue(f"ds_read_b128 {vr(KD+4*i,4)}, v21 offset:{1024*i}")
    for i in range(13):
        vm.need(("st", i + 1)); A("s_barrier")
        if opt.get("steps"): A("s_memrealtime s[96:97]")
        issue(i + 3)
        if opt.get("steps"): A("s_waitcnt lgkmcnt(0)"); A(f"s_mov_b32 s{82+i}, s96")
        if i == 0: vm.need("par"); A("v_lshlrev_b32 v22, 16, v22"); A("v_cndmask_b32 v22, 0, v22, vcc")
        if i == 1: lg.drain()
        if i == 2:
            vm.need("uout")
            A("s_mov_b64 exec, 0xff"); vm.issue("buffer_store_dwordx4 v[40:43], v5, s[56:59], s23 offen sc1", "sig"); A("s_mov_b64 exec, -1")
        if i == 11: vm.issue("buffer_load_dword v44, v38, s[56:59], s22 offen sc1", "flag")
    if opt.get("sp", 3): A(f"s_setprio {opt.get('sp', 3)}")
    A("s_lshl_b32 s75, s47, 12"); A(f"s_add_u32 s76, s75, {WS_UT}")
    vm.need("flag")
    A("v_cmp_ne_u32 vcc, s53, v44"); A("s_cbranch_vccz k_uready")
    gpoll(A, "k_utpoll", "buffer_load_dword v44, v38, s[56:59], s22 offen sc1", 44, "v_cmp_ne_u32 vcc, s53, v44", 8)
    A("k_uready:")
    stamp(A, opt, 10, True)
    for i in range(4): vm.issue(f"buffer_load_dwordx4 {vr(UIN+4*i,4)}, v5, s[56:59], s76 offen offset:{1024*i} sc1", "u")
    WR = 184; WE = 144; WX = 224
    vm.need(("st", 14)); A("s_barrier")
    if opt.get("wo13", 3): wo_groups(range(opt.get("wo13", 3)))
    A(f"v_mov_b32 v1, {CNT_L}")
    for i in range(3): lg.issue(f"ds_write_b128 v1, v[28:31] offset:{16*i}")
    stamp(A, opt, 2, True)
    lg.drain()
    vm.need(("st", 15)); A("s_barrier")
    stamp(A, opt, 3, True)
    wo_groups(range(6, 11), WE); wo_groups(range(opt.get("wo13", 3), 6))
    d = lambda a, b: KD + 4 * a + b
    A("v_add_u32 v4, 31, v0"); A("v_subrev_u32 v2, 32, v0"); A(f"v_cndmask_b32 v4, v4, v2, {HF}"); A("v_lshlrev_b32 v4, 2, v4")
    lg.issue(f"ds_bpermute_b32 v44, v4, v{d(0,3)}", "prev")
    A(f"v_add_f32 v{d(0,0)}, v{d(0,0)}, v22")
    A(f"v_readlane_b32 s78, v{d(0,3)}, 63")
    A("v_lshl_add_u32 v2, v18, 5, s74"); A("v_lshl_add_u32 v4, v3, 4, v2")
    A("v_lshl_add_u32 v2, v3, 10, v2")
    A("v_and_b32 v1, 15, v0"); A("v_lshl_add_u32 v1, v1, 2, s74"); A("v_mov_b32 v45, 0")
    lg.issue("ds_write_b32 v1, v45")
    A("v_cmp_eq_u32 vcc, 0, v0"); A("v_and_b32 v1, 1, v0"); A("v_cmp_eq_u32 s[70:71], 1, v1")
    A("v_mov_b32 v46, s78"); A(f"v_cndmask_b32 v46, v{d(1,0)}, v46, vcc")
    q = 48
    A(f"v_cvt_pk_bf16_f32 v{q}, v{d(1,0)}, v46"); A(f"v_cvt_pk_bf16_f32 v{q+1}, v{d(1,0)}, v{d(1,0)}")
    A(f"v_cvt_pk_bf16_f32 v{q+2}, v{d(1,1)}, v{d(1,0)}"); A(f"v_cvt_pk_bf16_f32 v{q+3}, v{d(1,2)}, v{d(1,1)}")
    lg.issue(f"ds_write_b128 v4, {vr(q,4)} offset:{(16+256)*4}")
    for k in range(2):
        a, b = d(2, 2 * k), d(2, 2 * k + 1); q = 52 + 4 * k
        A(f"v_cvt_pk_bf16_f32 v{q}, v{a}, v{a}"); A(f"v_cvt_pk_bf16_f32 v{q+3}, v{b}, v{a}"); A(f"v_cvt_pk_bf16_f32 v47, v{b}, v{b}")
        A(f"v_mov_b32 v{q+1}, v{q}"); A(f"v_cndmask_b32 v{q+2}, v{q}, v{q+3}, {HF}"); A(f"v_cndmask_b32 v{q+3}, v{q+3}, v47, {HF}")
        lg.issue(f"ds_write_b128 v4, {vr(q,4)} offset:{(16+512+256*k)*4}")
    for k in range(2):
        a, b = d(3, 2 * k), d(3, 2 * k + 1); q = 60 + 8 * k
        A(f"v_permlane32_swap_b32 v{a}, v{b}")
        A(f"v_cvt_pk_bf16_f32 v{q}, v{a}, v{a}"); A(f"v_cvt_pk_bf16_f32 v47, v{b}, v{a}"); A(f"v_cvt_pk_bf16_f32 v{q+6}, v{b}, v{b}")
        for j in range(1, 4): A(f"v_mov_b32 v{q+j}, v{q}")
        A(f"v_mov_b32 v{q+7}, v{q+6}")
        A(f"v_cndmask_b32 v{q+4}, v{q}, v47, s[70:71]"); A(f"v_cndmask_b32 v{q+5}, v47, v{q+6}, s[70:71]")
        lg.issue(f"ds_write_b128 v2, {vr(q,4)} offset:{(16+1024+512*k)*4}")
        lg.issue(f"ds_write_b128 v2, {vr(q+4,4)} offset:{(16+1024+512*k)*4+16}")
    lg.need("prev")
    A("v_cndmask_b32 v44, v44, v45, vcc")
    q = 76
    A(f"v_cvt_pk_bf16_f32 v{q}, v{d(0,0)}, v44")
    for j in range(1, 4): A(f"v_cvt_pk_bf16_f32 v{q+j}, v{d(0,j)}, v{d(0,j-1)}")
    lg.issue(f"ds_write_b128 v4, {vr(q,4)} offset:64")
    AB = 8; BB = 16
    A("v_and_b32 v17, 15, v0"); A("v_lshrrev_b32 v2, 4, v0")
    A("v_lshlrev_b32 v4, 3, v2"); A("v_sub_u32 v4, v17, v4"); A("v_add_u32 v4, 26, v4"); A(f"v_lshl_add_u32 v{AB}, v4, 2, s74")
    for k in range(1, 8): A(f"v_add_u32 v{AB+k}, {1024*k}, v{AB}")
    A(f"v_lshlrev_b32 v4, 5, v17"); A("v_lshl_add_u32 v4, v2, 4, v4"); A(f"v_add_u32 v{BB}, s63, v4")
    wo_groups(range(11, 16), WR)
    lg.issue("ds_write_b128 v36, v[28:31]")
    vm.need("u")
    for i in range(4): lg.issue(f"ds_write_b128 v37, {vr(UIN+4*i,4)} offset:{480+1024*i}")
    lg.drain()
    stamp(A, opt, 11, True)
    lds_wait(A, "k_ldone", 3, 4)
    A("v_add_u32 v39, s3, v5")
    for n, g in enumerate(range(6, 11)):
        vm.need(("wo", g))
        for j in range(2): lg.issue(f"ds_write_b128 v39, {vr(WE+8*n+4*j,4)} offset:{UNIT[g]+1024*j}")
    vm.need(("wo", 5))
    lg.drain()
    lds_add(A, 4)
    stamp(A, opt, 4, True)
    lds_wait(A, "k_hold", 2, 4, sleep=1)
    stamp(A, opt, 5, True)
    if opt.get("sp", 3): A("s_setprio 0")
    Y = 24; FA = [56, 120]; FB = [88, 152]

    def creads(s0):
        fs = s0 & 1; R = []
        for k in range(8):
            a = FA[fs] + 4 * k; b = FB[fs] + 4 * k
            R.append((f"ds_read_b128 {vr(b,4)}, v{BB} offset:{448-64*s0+512*k}", ("b", fs, k)))
            R.append((f"ds_read2_b32 {vr(a,2)}, v{AB+k} offset0:{32*s0+6} offset1:{32*s0+4}", ("a", fs, k)))
            R.append((f"ds_read2_b32 {vr(a+2,2)}, v{AB+k} offset0:{32*s0+2} offset1:{32*s0}", ("a", fs, k)))
        return R
    for r, tg in creads(0): lg.issue(r, tg)
    for s0 in range(8):
        fs = s0 & 1; R = creads(s0 + 1) if s0 < 7 else []; ri = 0
        order = [(s1, nu) for m in range(8) for (s1, nu) in ([(m, x) for x in range(m + 1)] + [(x, m) for x in range(m)]) if s1 + nu < 8]
        for k, (s1, nu) in enumerate(order):
            n = s1 + nu
            lg.need({("a", fs, s1), ("b", fs, nu)})
            first = (s0 == 0 and first_use(order, k))
            A(f"{MF16} {vr(Y+4*n,4)}, {vr(FA[fs]+4*s1,4)}, {vr(FB[fs]+4*nu,4)}, " + ("0" if first else vr(Y + 4 * n, 4)))
            if k >= 8 and ri < len(R): lg.issue(*R[ri]); ri += 1
        while ri < len(R): lg.issue(*R[ri]); ri += 1
    if opt.get("sp", 3): A(f"s_setprio {opt.get('sp', 3)}")
    lg.drain()
    lds_add(A, 6)
    stamp(A, opt, 6, True)
    A("v_and_b32 v4, 1, v2"); A("v_lshlrev_b32 v4, 9, v4"); A("v_lshl_add_u32 v4, v17, 5, v4"); A("v_lshrrev_b32 v2, 1, v2"); A("v_lshl_add_u32 v4, v2, 4, v4")
    A(f"s_add_u32 s76, s75, {WS_YT}")
    for k in range(4):
        q = 56 + 4 * k
        for j in range(2):
            A(f"v_cvt_pk_bf16_f32 v{q+2*j}, v{Y+8*k+4*j}, v{Y+8*k+4*j+1}"); A(f"v_cvt_pk_bf16_f32 v{q+2*j+1}, v{Y+8*k+4*j+2}, v{Y+8*k+4*j+3}")
    for k in range(4):
        q = 56 + 4 * k
        A(f"v_permlane16_swap_b32 v{q}, v{q+2}"); A(f"v_permlane16_swap_b32 v{q+1}, v{q+3}")
    A("v_add_u32 v2, s3, v5")
    for i in range(4): A(f"v_mov_b32 v{40+i}, s53")
    lds_wait(A, "k_cdone", 6, 4, sleep=1)
    stamp(A, opt, 14, True)
    vm.drain()
    for n, g in enumerate(range(11, 16)):
        if UNIT[g] >= 65536 and UNIT[g - 1] < 65536: A("v_add_u32 v2, 0x10000, v2")
        for j in range(2): lg.issue(f"ds_write_b128 v2, {vr(WR+8*n+4*j,4)} offset:{(UNIT[g]&65535)+1024*j}")
    lg.drain()
    lds_add(A, 5)
    stamp(A, opt, 7, True)
    if opt.get("ggate", 1): lds_wait(A, "k_gdone", 7, 4, sleep=1)
    for k in range(4):
        q = 56 + 4 * k
        vm.issue(f"buffer_store_dwordx4 {vr(q,4)}, v4, s[56:59], s76 offen offset:{1024*k} sc1", "ys")
    A(f"s_add_u32 s23, s23, {WS_FY-WS_FU}"); A(f"s_add_u32 s22, s22, {WS_FY-WS_FU}")
    vm.drain()
    stamp(A, opt, 13, True)
    A("s_mov_b64 exec, 0xff"); vm.issue("buffer_store_dwordx4 v[40:43], v5, s[56:59], s23 offen sc1", "sig"); A("s_mov_b64 exec, -1")
    A("s_cmp_ge_u32 s41, 2" if not opt.get("noytile") else "s_cmp_ge_u32 s41, 0"); A("s_cbranch_scc1 k_sdone")
    YIN = 24; YOUT = 56
    srd(A, 4, 30, 0x800000)
    A("v_lshrrev_b32 v1, 3, v0"); A("v_and_b32 v2, 7, v0"); A("v_lshlrev_b32 v4, 7, v0")
    A("s_lshl_b32 s64, s68, 18"); A("s_lshl_b32 s65, s69, 8"); A("s_add_u32 s64, s64, s65"); A("s_lshl_b32 s65, s41, 7"); A("s_add_u32 s64, s64, s65"); A(f"s_add_u32 s64, s64, {WS_YT}")
    A("v_lshlrev_b32 v18, 15, v1"); A("v_lshl_add_u32 v18, v2, 4, v18")
    A("s_lshl_b32 s66, s69, 19"); A("s_lshl_b32 s65, s41, 18"); A("s_add_u32 s66, s66, s65"); A("s_lshl_b32 s65, s68, 7"); A("s_add_u32 s66, s66, s65"); A("s_add_u32 s66, s66, 2048")
    A("v_lshlrev_b32 v19, 15, v2"); A("v_lshl_add_u32 v19, v1, 4, v19")
    A("s_mov_b32 s70, 0x05040100"); A("s_mov_b32 s71, 0x07060302")
    if opt.get("ygate", 1): lds_wait(A, "k_ygate", 8, 4, sleep=2)
    gpoll(A, "k_ypoll", "buffer_load_dword v9, v4, s[56:59], s22 offen sc1", 9, "v_cmp_ne_u32 vcc, s53, v9", opt.get("sleep4", 8), 101 if opt.get("stamps") else None)
    vm.q = []
    stamp(A, opt, 8, True)
    for c in range(8):
        vm.issue(f"buffer_load_dwordx4 {vr(YIN+4*c,4)}, v18, s[56:59], s64 offen sc1", "y")
        if c < 7: A("s_add_u32 s64, s64, 4096")
    vm.need("y")
    om = {0: "", 1: " sc1", 2: " nt", 3: " sc0 sc1"}[opt.get("ost", 0)]
    for c in range(8):
        for k in range(4): A(f"v_perm_b32 v{YOUT+4*c+k}, v{YIN+4*(2*k+1)+(c>>1)}, v{YIN+4*(2*k)+(c>>1)}, s{70+(c&1)}")
        A(f"buffer_store_dwordx4 {vr(YOUT+4*c,4)}, v19, s[4:7], s66 offen" + om)
        if c < 7: A("s_add_u32 s66, s66, 4096")
    A("k_sdone:")
    if opt.get("stamps"):
        A("s_waitcnt vmcnt(0)"); stamp(A, opt, 9, True); write_stamps(A)


HEADER = """; Hedgehog linear attention (QKV GEMM, feature maps, kv/z all-reduce, output GEMM) + S4 long convolution, one launch.
; Kernarg (128 bytes of pointers): x, wqkv, w_phi, wo, u, A_re, A_im, B_re, B_im, C_re, C_im, log_dt, Dskip, out, debug, ws
; waves 0-3: matrix work of the attention branch; waves 4-7: tile loading, SSM kernel generation, convolution""".split("\n")


def build(opt):
    t = assemble_file([(KNAME, 256, 512, 163840, kernel(opt), 256, None)], header=HEADER, align=not opt.get('noalign'))
    if not opt.get("list"): t = t.replace(f"; @launch kernel={KNAME} grid", "; @launch grid")
    return t


if __name__ == "__main__":
    opt = {}
    for a in sys.argv[2:]:
        k, _, v = a.partition("="); opt[k] = int(v) if v else 1
    open(sys.argv[1], "w").write(build(opt))
```

```python
import sys, re
from asmgen import *

KNAME = "concat_heads__linear_kernel_hedgehog__ssm_conv_s4__prompt_kernel"
WS_UT = 0x0000000
WS_YT = 0x0400000
WS_O = 0x0800000
WS_KVP = 0x0C00000
WS_ZP = 0x0E00000
WS_FK = 0x0E40000
WS_FO = 0x0E48000
WS_FU = 0x0E50000
WS_FY = 0x0E58000
WS_EP = 0x0EC0000
WS_DBG = 0x1000000
WS_SIZE = 0x10000000

STAGE = 40960
WOFF = 16384
NST = 16
TBL = 9216
TB_L = 40960
X_L = 77824
U_L = 95232
WPHI_L = 122880
UT_L = 126976
KD_L = 143360
CNT_L = 77728
UNIT = [122880 + 8192 * i for i in range(5)] + [113664] + [8192 * i for i in range(5)] + [40960 + 8192 * i for i in range(4)] + [95232]
LOG2E = 0x3FB8AA3B
INV2PI = 0x3E22F983
OOB = 0x7F000000
SPIN = 0x100000
MF32 = "v_mfma_f32_32x32x16_bf16"
MF16 = "v_mfma_f32_16x16x32_bf16"


def vr(a, n=1):
    return f"v{a}" if n == 1 else f"v[{a}:{a+n-1}]"


def cmul(r, z, w, plain=False):
    if plain:
        return [f"v_mul_f32 v{r}, v{z}, v{w}\nv_mul_f32 v{r+1}, v{z+1}, v{w}",
                f"v_fma_f32 v{r}, -v{z+1}, v{w+1}, v{r}\nv_fmac_f32 v{r+1}, v{z}, v{w+1}"]
    return [f"v_pk_mul_f32 {vr(r,2)}, {vr(z,2)}, {vr(w,2)} op_sel_hi:[1,0]",
            f"v_pk_fma_f32 {vr(r,2)}, {vr(z,2)}, {vr(w,2)}, {vr(r,2)} op_sel:[1,1,0] op_sel_hi:[0,1,1] neg_lo:[1,0,0]"]


def unpk(t):
    if not t.startswith("v_pk_"): return [t]
    mm = re.match(r"v_pk_(\w+)_f32 (.*)", t); op = mm.group(1)
    regs = re.findall(r"([vs])\[(\d+):\d+\]", mm.group(2)); neg = "neg_lo" in t
    hi = re.search(r"op_sel_hi:\[([\d,]+)\]", t); hi = [int(x) for x in hi.group(1).split(",")] if hi else [1, 1, 1]
    R = []
    for h in range(2):
        o = [f"{regs[0][0]}{int(regs[0][1])+h}"] + [f"{k}{int(n)+(h if hi[i] else 0)}" for i, (k, n) in enumerate(regs[1:])]
        if neg: o[1] = "-" + o[1]
        R.append(f"v_{op}_f32 " + ", ".join(o))
    return R


def srd(A, d, base, size, add=None):
    if add is None:
        A(f"s_mov_b32 s{d}, s{base}"); A(f"s_mov_b32 s{d+1}, s{base+1}")
    else:
        A(f"s_add_u32 s{d}, s{base}, {add}"); A(f"s_addc_u32 s{d+1}, s{base+1}, 0")
    A(f"s_mov_b32 s{d+2}, {size}"); A(f"s_mov_b32 s{d+3}, 0x20000")


def stamp(A, opt, k, s=False):
    if opt.get("stamps") and not (s and opt.get("steps") and k >= 2):
        A("s_memrealtime s[94:95]"); A("s_waitcnt lgkmcnt(0)"); A(f"s_mov_b32 s{80+k}, s94")


def write_stamps(A):
    A("s_lshl_b32 s70, s2, 3"); A("s_add_u32 s70, s70, s40"); A("s_lshl_b32 s70, s70, 6"); A(f"s_add_u32 s70, s70, {WS_DBG}")
    for i in range(16): A(f"v_mov_b32 v{16+i}, s{80+i}")
    A("v_mov_b32 v32, s32"); A("v_mov_b32 v33, s33"); A("v_mov_b32 v12, s70")
    A("v_add_u32 v13, 0x40000, v12"); A("global_store_dwordx2 v13, v[32:33], s[34:35]")
    for i in range(4): A(f"global_store_dwordx4 v12, {vr(16+4*i,4)}, s[34:35] offset:{16*i}")


def softmax_parts(P, En, T, o0, o1, sL, plain):
    m, nm = T, T + 2
    R = []; A = R.append
    A(f"v_max3_f32 v{m}, v{P}, v{P+1}, v{P+2}")
    A(f"v_max3_f32 v{nm}, -v{P}, -v{P+1}, -v{P+2}")
    for i in range(3, 15, 2):
        A(f"v_max3_f32 v{m}, v{m}, v{P+i}, v{P+i+1}")
        A(f"v_max3_f32 v{nm}, v{nm}, -v{P+i}, -v{P+i+1}")
    A(f"v_max_f32 v{m}, v{m}, v{P+15}")
    A(f"v_max_f32_e64 v{nm}, v{nm}, -v{P+15}")
    A(f"v_permlane32_swap_b32 v{m}, v{nm}")
    A(f"v_max_f32 v{m}, v{m}, v{nm}")
    A(f"v_mul_f32 v{m}, {hex(LOG2E | 0x80000000)}, v{m}")
    A(f"v_mov_b32 v{nm}, v{m}")
    A(f"v_permlane32_swap_b32 v{m}, v{nm}")
    for i in range(0, 16, 2):
        A(f"v_pk_fma_f32 {vr(En+i,2)}, {vr(P+i,2)}, s[{sL}:{sL+1}], {vr(nm,2)} op_sel_hi:[1,1,0] neg_lo:[1,0,0] neg_hi:[1,0,0]")
        A(f"v_pk_fma_f32 {vr(P+i,2)}, {vr(P+i,2)}, s[{sL}:{sL+1}], {vr(m,2)} op_sel_hi:[1,1,0]")
    for i in range(16):
        A(f"v_exp_f32 v{En+i}, v{En+i}")
        A(f"v_exp_f32 v{P+i}, v{P+i}")
    A(f"v_pk_add_f32 {vr(nm,2)}, {vr(En,2)}, {vr(En+2,2)}")
    A(f"v_pk_add_f32 {vr(m,2)}, {vr(P,2)}, {vr(P+2,2)}")
    for i in range(4, 16, 2):
        A(f"v_pk_add_f32 {vr(nm,2)}, {vr(nm,2)}, {vr(En+i,2)}")
        A(f"v_pk_add_f32 {vr(m,2)}, {vr(m,2)}, {vr(P+i,2)}")
    A(f"v_add_f32 v{nm}, v{nm}, v{nm+1}")
    A(f"v_add_f32 v{m}, v{m}, v{m+1}")
    A(f"v_permlane32_swap_b32 v{m}, v{nm}")
    A(f"v_add_f32 v{m}, v{m}, v{nm}")
    A(f"v_rcp_f32 v{m}, v{m}")
    A(f"v_mov_b32 v{nm}, v{m}")
    A(f"v_permlane32_swap_b32 v{m}, v{nm}")
    stats = R; R = []; A = R.append
    for src, r, o in ((En, nm, o1), (P, m, o0)):
        for i in range(0, 16, 2): A(f"v_pk_mul_f32 {vr(src+i,2)}, {vr(src+i,2)}, {vr(r,2)} op_sel_hi:[1,0]")
        for i in range(8): A(f"v_cvt_pk_bf16_f32 v{o+i}, v{src+2*i}, v{src+2*i+1}")
    if plain:
        stats = [y for x in stats for y in unpk(x)]; R = [y for x in R for y in unpk(x)]
    return stats, R


def zipper(A, a, b):
    for i in range(max(len(a), len(b))):
        if i < len(a): A(a[i])
        if i < len(b): A(b[i])


def weave(A, main, extra, start=0):
    n = len(main) - start; done = 0
    for i, x in enumerate(main):
        A(x)
        if i >= start:
            upto = (len(extra) * (i - start + 1) + n - 1) // n
            while done < min(upto, len(extra)): A(extra[done]); done += 1


def lds_add(A, cnt):
    A(f"v_mov_b32 v1, {CNT_L+4*cnt}" if isinstance(cnt, int) else f"v_mov_b32 v1, {cnt}")
    A("v_mov_b32 v7, 1"); A("s_mov_b64 exec, 1"); A("ds_add_u32 v1, v7"); A("s_mov_b64 exec, -1")


def lds_wait(A, name, cnt, target, sleep=0):
    A(f"v_mov_b32 v1, {CNT_L+4*cnt}" if isinstance(cnt, int) else f"v_mov_b32 v1, {cnt}")
    A(f"s_mov_b32 s79, {SPIN}")
    A(f"{name}:")
    A("ds_read_b32 v7, v1")
    A("s_sub_u32 s79, s79, 1"); A(f"s_cbranch_scc1 {name}_x")
    A("s_waitcnt lgkmcnt(0)")
    A("v_readfirstlane_b32 s78, v7"); A(f"s_cmp_ge_u32 s78, {target}"); A(f"s_cbranch_scc1 {name}_x")
    if sleep: A(f"s_sleep {sleep}")
    A(f"s_branch {name}")
    A(f"{name}_x:")
    A("s_waitcnt lgkmcnt(0)")


def gpoll(A, name, load, reg, bad, sleep, cnt=None):
    A(f"s_mov_b32 s79, {SPIN}")
    A(f"s_branch {name}")
    A(f"{name}_again:")
    A(f"s_sleep {sleep}")
    A(f"{name}:")
    A(load)
    A("s_sub_u32 s79, s79, 1"); A(f"s_cbranch_scc1 {name}_x")
    A("s_waitcnt vmcnt(0)")
    A(bad); A(f"s_cbranch_vccnz {name}_again")
    A(f"{name}_x:")
    A("s_waitcnt vmcnt(0)")
    if cnt: A(f"s_sub_u32 s{cnt}, {SPIN}, s79")


def epoch(A):
    A(f"s_add_u32 s0, s34, {WS_EP}"); A("s_addc_u32 s1, s35, 0"); A("s_load_dword s53, s[0:1], 0")


def arrive(A, lg, cnt, n, skip):
    A(f"v_mov_b32 v1, {CNT_L+4*cnt}"); A("v_mov_b32 v7, 1"); A("s_mov_b64 exec, 1"); A("ds_add_rtn_u32 v7, v1, v7"); A("s_mov_b64 exec, -1")
    lg.drain()
    A("v_readfirstlane_b32 s78, v7"); A(f"s_cmp_lg_u32 s78, {n-1}"); A(f"s_cbranch_scc1 {skip}")


def signal(A, lg, name, cnt, soff, vaddr16, vtmp):
    arrive(A, lg, cnt, 4, name)
    for i in range(4): A(f"v_mov_b32 v{vtmp+i}, s53")
    A("s_mov_b64 exec, 0xff")
    A(f"buffer_store_dwordx4 {vr(vtmp,4)}, v{vaddr16}, s[56:59], {soff} offen sc1")
    A("s_mov_b64 exec, -1")
    A(f"{name}:")


def wait_flags(A, lg, vm, name, cnt, n, soff, vline, vtmp, sleep, stat=None):
    arrive(A, lg, cnt, n, name + "_w")
    gpoll(A, name, f"buffer_load_dword v{vtmp}, v{vline}, s[56:59], {soff} offen sc1", vtmp, f"v_cmp_ne_u32 vcc, s53, v{vtmp}", sleep, stat)
    lds_add(A, cnt)
    A(f"{name}_w:")
    lds_wait(A, name + "_l", cnt, n + 1)
    vm.drain()


def kernel(opt):
    p = Prog(); A = p
    A("s_cmp_ge_u32 s2, 256"); A("s_cbranch_scc1 k_end")
    A("s_load_dwordx16 s[4:19], s[0:1], 0")
    A("s_load_dwordx16 s[20:35], s[0:1], 64")
    if opt.get("stamps"): A("s_memrealtime s[94:95]")
    A("s_and_b32 s36, s2, 7"); A("s_lshr_b32 s37, s2, 3")
    A("s_and_b32 s38, s36, 3"); A("s_lshl_b32 s38, s38, 2"); A("s_and_b32 s39, s37, 3"); A("s_add_u32 s38, s38, s39")
    A("s_lshr_b32 s39, s36, 2"); A("s_lshl_b32 s39, s39, 3"); A("s_lshr_b32 s41, s37, 2"); A("s_add_u32 s39, s39, s41")
    A("v_lshrrev_b32 v1, 6, v0"); A("v_and_b32 v0, 63, v0"); A("v_readfirstlane_b32 s40, v1")
    A("s_lshr_b32 s68, s37, 4"); A("s_lshl_b32 s69, s36, 1"); A("s_add_u32 s68, s68, s69")
    A("s_and_b32 s69, s37, 15")
    g2 = opt.get("g2map", 2)
    if g2 == 2:
        A("s_mov_b32 s100, s68"); A("s_add_u32 s101, s69, 2"); A("s_and_b32 s101, s101, 15"); A("s_mov_b32 s97, s101")
    else:
        A("s_lshr_b32 s100, s36, 1"); A("s_lshl_b32 s100, s100, 2"); A("s_lshr_b32 s97, s37, 3"); A("s_add_u32 s100, s100, s97")
        A("s_add_u32 s101, s37, 2"); A("s_and_b32 s101, s101, 7"); A("s_lshl_b32 s97, s97, 1"); A("s_add_u32 s97, s97, s101"); A("s_lshl_b32 s97, s97, 1")
        A("s_and_b32 s3, s36, 1"); A("s_lshl_b32 s3, s3, 3"); A("s_add_u32 s101, s101, s3")
    A("s_cmp_ge_u32 s40, 4"); A("s_cbranch_scc1 k_s")
    part_g(A, opt)
    A("k_s:")
    part_s(A, opt)
    A("k_end:"); A("s_endpgm")
    A("k_last:")
    return p


def kgen(A, name, opt, pc, mid, RAW, LDT, ID, M, W, KD, AF, DH, DL, HF):
    DT, AR, AI, t0, t1 = M, M + 2, M + 3, M + 4, M + 5
    W1, W256, W2, W4, W8, W32, W40, E4, CC, GA, GB, GC, GD, WQ, LA, LC = range(W, W + 32, 2)
    mf = lambda d, a, b, first: f"{MF32} {vr(d,16)}, {vr(a,4)}, {vr(b,4)}, " + ("0" if first else vr(d, 16))
    A(f"v_lshlrev_b32 v{LDT}, 16, v{LDT}"); A(f"s_mov_b32 s78, {hex(LOG2E)}")
    A(f"v_mul_f32 v{t0}, s78, v{LDT}"); A(f"v_fma_f32 v{t1}, v{LDT}, s78, -v{t0}"); A(f"v_fmac_f32 v{t1}, 0x32a57060, v{LDT}")
    A(f"v_exp_f32 v{t0}, v{t0}"); A(f"v_mul_f32 v{t1}, 0x3f317218, v{t1}"); A(f"v_fma_f32 v{t0}, v{t0}, v{t1}, v{t0}")
    A(f"v_cvt_pk_bf16_f32 v{DT}, v{t0}, v{t0}"); A(f"v_lshlrev_b32 v{DT}, 16, v{DT}")
    pk = (lambda t: unpk(t)) if pc else (lambda t: [t])
    cm = lambda r, z, w: [x.split("\n") for x in cmul(r, z, w, pc)]
    post = []
    for s in range(4):
        post += [f"v_cvt_pk_bf16_f32 v{DH[0]+4*s+i}, v{DH[0]+4*s+i}, v{DH[1]+4*s+i}" for i in range(4)]
        post += [f"v_cvt_pk_bf16_f32 v{DL[0]+4*s+i}, v{DL[0]+4*s+i}, v{DL[1]+4*s+i}" for i in range(4)]
        if s: post.insert(len(post) - 6, mf(KD, DH[0] + 4 * s - 4, DL[0] + 4 * s - 4, False))
    lastk = mf(KD, DH[0] + 12, DL[0] + 12, False)
    tm = lambda t: [mf(d, AF[t] + 4 * i, ID + 4 * t, t == 0) for i, d in enumerate((DH[0], DH[1], DL[0], DL[1]))]
    A("s_mov_b32 s46, 0")
    A(f"{name}_kgen:")
    pre = [f"v_lshlrev_b32 v{d}, 16, v{RAW+a}" for d, a in [(AR, 0), (AI, 1), (GA, 2), (GA + 1, 3), (GB, 4), (GB + 1, 5)]]
    pre += [f"v_mul_f32 v{AR}, v{AR}, v{DT}", f"v_mul_f32 v{AI}, v{AI}, v{DT}", f"v_mul_f32 v{AR}, {hex(LOG2E)}, v{AR}", f"v_mul_f32 v{AI}, {hex(INV2PI)}, v{AI}"]
    sh = []
    for a in range(6): sh += [f"v_lshrrev_b32 v{RAW+a}, 16, v{RAW+a}"]
    pre += [f"v_exp_f32 v{t0}, v{AR}", f"v_fract_f32 v{t1}, v{AI}", f"v_cos_f32 v{W1}, v{t1}", f"v_sin_f32 v{W1+1}, v{t1}"] + sh[:2]
    pre += [f"v_mul_f32 v{W1}, v{W1}, v{t0}", f"v_mul_f32 v{W1+1}, v{W1+1}, v{t0}",
            f"v_mul_f32 v{t0}, 0x43800000, v{AR}", f"v_mul_f32 v{t1}, 0x43800000, v{AI}",
            f"v_exp_f32 v{t0}, v{t0}", f"v_fract_f32 v{t1}, v{t1}", f"v_cos_f32 v{W256}, v{t1}", f"v_sin_f32 v{W256+1}, v{t1}"] + sh[2:4]
    pre += [f"v_mul_f32 v{W256}, v{W256}, v{t0}", f"v_mul_f32 v{W256+1}, v{W256+1}, v{t0}"] + sh[4:]
    for r in range(16): pass
    weave(A, pre[:26], tm(1))
    for x in pre[26:]: A(x)
    A("s_cmp_eq_u32 s46, 0"); A(f"s_cbranch_scc1 {name}_kfirst")
    for x in post: A(x)
    A("s_nop 1"); A(lastk)
    A(f"{name}_kfirst:")
    def two(c1, c2):
        for x in c1[0] + c2[0] + c1[1] + c2[1]: A(x)
    def one(c1, fill):
        for x in c1[0] + fill[:1] + c1[1] + fill[1:]: A(x)
    two(cm(W2, W1, W1), cm(CC, GA, GB))
    one(cm(W4, W2, W2), [f"v_mul_f32 v{CC}, v{CC}, v{DT}", f"v_mul_f32 v{CC+1}, v{CC+1}, v{DT}"])
    one(cm(W8, W4, W4), [f"v_cndmask_b32 v{E4}, 1.0, v{W4}, {HF}", f"v_cndmask_b32 v{E4+1}, 0, v{W4+1}, {HF}"])
    two(cm(W40, W8, W8), cm(GA, CC, E4))
    two(cm(W32, W40, W40), cm(GB, GA, W1))
    two(cm(W40, W32, W8), cm(GC, GB, W1))
    A(f"v_cndmask_b32 v{LA}, 1.0, v{W32}, {HF}"); A(f"v_cndmask_b32 v{LA+1}, 0, v{W32+1}, {HF}")
    hi = [None, None, None, (GD, GC, W1), (GB, GA, W256), (GC, GB, W2), (GD, GC, W2), (WQ, W256, E4),
          (GA, GB, W256), (GC, GA, W4), (GB, GA, W256), (GD, GB, W4), (GA, GB, WQ), (GC, GA, W256), (GB, GC, W256), (GD, GB, W256)]
    hreg = [GA, GB, GC, GD, GB, GC, GD, GD, GA, GC, GB, GD, GA, GC, GB, GD]
    def hpack(k):
        x, y = hreg[k - 1], hreg[k]; wd = AF[k >> 3] + ((k >> 1) & 3)
        return [f"v_cvt_pk_bf16_f32 v{wd}, v{x}, v{y}", f"v_cvt_pk_bf16_f32 v{wd+4}, -v{x+1}, -v{y+1}"]
    def lpack(k):
        wd = AF[k >> 3] + ((k >> 1) & 3)
        return [f"v_cvt_pk_bf16_f32 v{wd+8}, v{LA}, v{LC}", f"v_cvt_pk_bf16_f32 v{wd+12}, v{LA+1}, v{LC+1}"]
    for x in hpack(1): A(x)
    pendm = []
    for k in range(1, 16):
        cl_ = cm(LC, LA, W8) if k & 1 else cm(LA, LC, W8 if k & 3 else W40)
        if hi[k] is None: one(cl_, ["s_nop 0"] if not pc else [])
        else: two(cm(*hi[k]), cl_)
        if k & 1:
            P_ = (hpack(k) if k > 1 else ["s_nop 0"]) + lpack(k)
            if k >= 9: A(tm(0)[(k - 9) >> 1])
            for x in P_: A(x)
    A("s_add_u32 s46, s46, 1"); A("s_cmp_lt_u32 s46, 2")
    A(f"s_cbranch_scc1 {name}_kgen")
    x = tm(1); A(x[0]); A(x[1])
    mid()
    A(x[2]); A(x[3])
    for x in post: A(x)
    A("s_nop 1"); A(lastk)


def ident(A, vc, vh, ID):
    A(f"v_lshlrev_b32 v176, 2, v{vh}"); A(f"v_sub_u32 v176, v{vc}, v176")
    A("v_mov_b32 v177, 0x3f80"); A("v_mov_b32 v178, 0x3f800000")
    for t in range(2):
        for wd in range(4):
            c0 = 16 * t + 8 * (wd >> 1) + 2 * (wd & 1); d = ID + 4 * t + wd
            A(f"v_cmp_eq_u32 vcc, {c0}, v176"); A(f"v_cmp_eq_u32 s[98:99], {c0+1}, v176")
            A(f"v_cndmask_b32 v{d}, 0, v177, vcc"); A(f"v_cndmask_b32 v{d}, v{d}, v178, s[98:99]")


def part_g(A, opt):
    lg = Cnt(A, "lgkmcnt"); vm = Cnt(A, "vmcnt")
    plain = opt.get("plainsm")
    ACC = 16; F = [112, 132]; WP = 152; ID = 160; RAW = 168
    cvt = lambda d, s_, n=8: [f"v_cvt_pk_bf16_f32 v{d+i}, v{s_+2*i}, v{s_+2*i+1}" for i in range(n)]
    mf = lambda d, a, b, first: f"{MF32} {vr(d,16)}, {vr(a,4)}, {vr(b,4)}, " + ("0" if first else vr(d, 16))
    A("s_and_b32 s42, s40, 1"); A("s_lshr_b32 s43, s40, 1")
    A("s_lshl_b32 s47, s36, 5"); A("s_add_u32 s47, s47, s37"); A("s_lshl_b32 s47, s47, 2"); A("s_add_u32 s47, s47, s40")
    A("v_and_b32 v8, 31, v0"); A("s_lshl_b32 s60, s47, 8"); A("v_lshl_add_u32 v2, v8, 3, s60"); A("s_lshl_b32 s60, s47, 1"); A("v_mov_b32 v3, s60")
    A("s_lshl_b32 s44, s38, 1"); A("s_add_u32 s44, s44, s42")
    A("s_lshl_b32 s45, s44, 1"); A("s_add_u32 s45, s45, s43"); A("s_lshl_b32 s45, s45, 10")
    A("v_lshl_add_u32 v4, v0, 4, s45")
    A("s_waitcnt lgkmcnt(0)")
    if opt.get("stamps"): A("s_mov_b32 s80, s94")
    epoch(A)
    vm.issue("global_load_ushort v180, v3, s[26:27]", "par")
    for a in range(6): vm.issue(f"global_load_dword v{RAW+a}, v2, s[{14+2*a}:{15+2*a}]", "par")
    vm.issue("global_load_dwordx4 v[12:15], v4, s[8:9]", "wphi")
    if not not opt.get("codepf"):
        A("s_getpc_b64 s[62:63]")
        A("k_pc:")
        A("s_and_b32 s61, s37, 7"); A("s_lshl_b32 s61, s61, 5"); A("v_add_u32 v7, s61, v8"); A("v_lshlrev_b32 v7, 7, v7")
        A("v_min_u32 v7, k_last-k_pc-4, v7")
        vm.issue("global_load_dword v181, v7, s[62:63]", "code")
    srd(A, 56, 34, WS_SIZE); A(f"s_mov_b32 s72, {OOB}")
    A("s_lshl_b32 s73, s38, 2"); A("s_add_u32 s73, s73, s40"); A("s_lshl_b32 s73, s73, 4")
    A("v_lshrrev_b32 v9, 5, v0")
    ident(A, 8, 9, ID)
    A("s_lshl_b32 s46, s43, 13")
    A("v_bfe_u32 v10, v8, 1, 3"); A("v_xor_b32 v10, v10, v9"); A("v_lshl_add_u32 v11, v8, 7, s46")
    for t in range(4):
        A(f"v_xor_b32 v7, {2*t}, v10"); A(f"v_lshl_add_u32 v{2+t}, v7, 4, v11")
    A("v_bfe_u32 v10, v0, 2, 2")
    A("v_lshrrev_b32 v11, 1, v10"); A("v_xor_b32 v11, s42, v11")
    A("v_lshl_add_u32 v7, v9, 3, v10"); A("v_lshlrev_b32 v7, 7, v7"); A("v_lshl_add_u32 v7, v11, 6, v7")
    A("v_bfe_u32 v11, v0, 4, 1"); A("v_lshlrev_b32 v1, 5, v11"); A("v_and_b32 v11, 3, v0"); A("v_lshl_add_u32 v1, v11, 3, v1")
    A("v_add_u32 v7, v7, v1"); A(f"v_add_u32 v6, {WOFF}, v7")
    A("v_lshl_add_u32 v10, v9, 2, v10"); A("v_lshl_add_u32 v1, v10, 6, v1")
    A("s_lshl_b32 s60, s42, 11"); A(f"s_add_u32 s60, s60, {WPHI_L}"); A("v_add_u32 v1, s60, v1")
    HF = "s[70:71]"
    A(f"v_cmp_eq_u32 {HF}, 1, v9")
    KD = 224
    for r in range(16): A(f"v_mov_b32 v{KD+r}, 0")
    for r in list(range(32)) + list(range(64, 96)): A(f"v_mov_b32 v{ACC+r}, 0")
    A("s_lshl_b32 s60, s42, 1"); A("s_add_u32 s60, s60, s43"); A("s_lshl_b32 s60, s60, 10"); A(f"s_add_u32 s60, s60, {WPHI_L}")
    A("v_lshl_add_u32 v10, v0, 4, s60")
    A("s_lshl_b32 s60, s40, 12"); A(f"s_add_u32 s60, s60, {KD_L}"); A("v_lshl_add_u32 v11, v0, 4, s60")
    A("s_mul_i32 s47, s43, 0x80008000")
    vm.need("par")
    lg.drain()
    stamp(A, opt, 1)
    if opt.get("dly_g"): A(f"s_sleep {opt['dly_g']}")
    def mid():
        vm.need("wphi"); lg.issue("ds_write_b128 v10, v[12:15]"); A("s_add_u32 s53, s53, 1")
    kgen(A, "k_g", opt, opt.get("gplain", 0), mid, RAW, 180, ID, 182, 188, KD, [240, 64], [112, 128], [144, 48], HF)
    for r in range(32, 64): A(f"v_mov_b32 v{ACC+r}, 0")
    for i in range(4): lg.issue(f"ds_write_b128 v11, {vr(KD+4*i,4)} offset:{1024*i}")
    stamp(A, opt, 13)
    lg.drain()

    def reads(fs, t):
        b = F[fs]
        def W(g): return [(f"ds_read_b64_tr_b16 {vr(b+8+4*g+2*j,2)}, v6 offset:{t*6144+g*2048+j*512}", ("w", fs, g)) for j in range(2)]
        return [(f"ds_read_b128 {vr(b,4)}, v{2+t}", ("x", fs, 0))] + W(0) + [(f"ds_read_b128 {vr(b+4,4)}, v{2+t} offset:4096", ("x", fs, 1))] + W(1) + W(2)

    def mfs(fs):
        R = []
        for i in range(6):
            b = F[fs]; g = i // 2; blk = i % 2; a = ACC + 16 * i
            X = vr(b + 4 * blk, 4); Wf = vr(b + 8 + 4 * g, 4)
            R.append((f"{MF32} {vr(a,16)}, " + (f"{Wf}, {X}" if g < 2 else f"{X}, {Wf}") + f", {vr(a,16)}", {("x", fs, blk), ("w", fs, g)}))
        return R
    A("s_mov_b32 s50, 0"); A("s_mov_b32 s51, 0")
    A("s_barrier")
    stamp(A, opt, 2)
    if opt.get("stamps"): A("s_memtime s[98:99]"); A("s_waitcnt lgkmcnt(0)")
    for t in range(2):
        for j in range(2):
            lg.issue(f"ds_read_b64_tr_b16 {vr(WP+4*t+2*j,2)}, v1 offset:{(16*t+8*j)*64}", "wp")
    for r, tg in reads(0, 0): lg.issue(r, tg)
    lg.need("wp")
    for i in range(8): A(f"v_xor_b32 v{WP+i}, s47, v{WP+i}")
    q0 = list(lg.q)
    slots = [2, 2, 2, 2, 0, 0]
    A("k_gloop:")
    for t in range(4):
        fs = t & 1; R = reads(fs ^ 1, (t + 1) & 3); M = mfs(fs); ri = 0; last = (t == 3)
        if last:
            A("s_add_u32 s51, s51, 1"); A(f"s_mov_b32 s52, {STAGE}"); A("s_cmp_eq_u32 s51, 3")
            A(f"s_cselect_b32 s52, {(-2*STAGE)&0xffffffff}, s52"); A("s_cselect_b32 s51, 0, s51")
        for i, (m, tags) in enumerate(M):
            lg.need(tags); A(m)
            if last and i == 0:
                A("v_add_u32 v2, s52, v2"); A("v_add_u32 v6, s52, v6")
            for k in range(slots[i]): lg.issue(*R[ri]); ri += 1
            if last and i == 4:
                for a in (3, 4, 5): A(f"v_add_u32 v{a}, s52, v{a}")
                A("s_add_u32 s50, s50, 1"); A(f"s_cmp_lt_u32 s50, {NST}")
            if t == 2 and i == 4: A(f"s_cmp_eq_u32 s50, {NST-1}")
            if t == 2 and i == 5:
                lg.drain(); A("s_cbranch_scc1 k_nobar"); A("s_barrier"); A("k_nobar:")
    vm.q = []
    assert lg.q == q0
    A("s_cbranch_scc1 k_gloop")
    lg.drain()
    stamp(A, opt, 3)
    if opt.get("stamps"): A("s_memtime s[94:95]"); A("s_waitcnt lgkmcnt(0)"); A("s_sub_u32 s33, s94, s98")
    Q, K, V = ACC, ACC + 32, ACC + 64
    KB = 112; VB = 128; PK = [168, 184]; EN = [200, 216]; T = [232, 236]; ONES = 8
    if opt.get("dly_t"): A(f"s_sleep {opt['dly_t']}")
    if opt.get("gp", 3): A(f"s_setprio {opt.get('gp', 3)}")
    lds_add(A, 3)
    A(f"s_mov_b32 s54, {hex(LOG2E)}"); A(f"s_mov_b32 s55, {hex(LOG2E)}")
    for x in cvt(KB, K): A(x)
    x = cvt(KB + 8, K + 16)
    A(x[0]); A(mf(PK[0], WP, KB, True))
    for y in x[1:]: A(y)
    A(mf(PK[0], WP + 4, KB + 4, False))
    x = cvt(VB, V) + cvt(VB + 8, V + 16)
    weave(A, x, [mf(PK[1], WP, KB + 8, True), mf(PK[1], WP + 4, KB + 12, False)])
    for i in range(4): A(f"v_mov_b32 v{ONES+i}, 0x3f803f80")
    A(f"s_mul_i32 s60, s40, 4352"); A(f"s_add_u32 s60, s60, {X_L}")
    A("s_xor_b32 s61, s40, 2"); A(f"s_mul_i32 s61, s61, 4352"); A(f"s_add_u32 s61, s61, {X_L}")
    PH = [48, 64]; KV = [80, 96]; TA = [112, 48]; Z = [168, 200]
    st0, fin0 = softmax_parts(PK[0], EN[0], T[0], PH[0], PH[0] + 8, 54, plain)
    st1, fin1 = softmax_parts(PK[1], EN[1], T[1], PH[1], PH[1] + 8, 54, plain)
    zipper(A, st0, st1)
    TD = [[PK[0], EN[0]], [PK[1], EN[1]]]
    half = len(fin0) // 2
    trn = lambda b, s: [mf(TD[b][s], PH[b] + 8 * s + 4 * t, ID + 4 * t, t == 0) for t in range(2)]
    kvm = lambda b, s: [mf(KV[s], TA[b] + 8 * s + 4 * t, VB + 8 * b + 4 * t, b == 0 and t == 0) for t in range(2)]
    zm = lambda b, s: [mf(Z[s], ONES, TA[b] + 8 * s + 4 * t, b == 0 and t == 0) for t in range(2)]
    for y in fin0[:half]: A(y)
    weave(A, fin0[half:], trn(0, 1), 2)
    weave(A, fin1[:half], trn(0, 0), 2)
    weave(A, fin1[half:], trn(1, 1), 2)
    weave(A, cvt(TA[0] + 8, TD[0][1]) + cvt(TA[0], TD[0][0]), trn(1, 0), 2)
    weave(A, cvt(TA[1] + 8, TD[1][1]), kvm(0, 1))
    adr = ["v_lshl_add_u32 v12, v0, 4, s60", "v_lshl_add_u32 v13, v0, 4, s61", "v_lshl_add_u32 v14, v0, 2, s60", "v_lshl_add_u32 v15, v0, 2, s61",
           "v_lshlrev_b32 v5, 4, v0", "v_lshlrev_b32 v6, 2, v0", "v_cmp_gt_u32 vcc, 32, v0", f"v_mov_b32 v4, {OOB}", "s_nop 0", "v_cndmask_b32 v4, v4, v6, vcc"]
    weave(A, cvt(TA[1], TD[1][0]) + adr, kvm(1, 1) + zm(0, 1))
    for y in zm(1, 1) + kvm(0, 0): A(y)
    A("s_lshl_b32 s62, s42, 2"); A(f"s_add_u32 s62, s62, {CNT_L}")
    A("s_add_u32 s67, s73, s39")
    A("s_lshl_b32 s74, s67, 11"); A(f"s_add_u32 s74, s74, {WS_KVP}"); A("s_lshl_b32 s75, s67, 7"); A(f"s_add_u32 s75, s75, {WS_ZP}")
    rest = kvm(1, 0) + zm(0, 0) + zm(1, 0)
    for i in range(4):
        lg.issue(f"ds_write_b128 v12, {vr(KV[1]+4*i,4)} offset:{1024*i}")
        A(rest[i])
    lg.issue(f"ds_write_b32 v14, v{Z[1]} offset:4096")
    for y in rest[4:]: A(y)
    lg.drain()
    lds_add(A, "s62")
    lds_wait(A, "k_spinA", "s62", 2)
    for i in range(4): lg.issue(f"ds_read_b128 {vr(KV[1]+4*i,4)}, v13 offset:{1024*i}", i)
    lg.issue(f"ds_read_b32 v{Z[1]}, v15 offset:4096", "z")
    PB = 128
    for i in range(4):
        lg.need(i)
        for j in range(4): A(f"v_add_f32 v{KV[0]+4*i+j}, v{KV[0]+4*i+j}, v{KV[1]+4*i+j}")
        for j in range(2): A(f"v_cvt_pk_bf16_f32 v{PB+2*i+j}, v{KV[0]+4*i+2*j}, v{KV[0]+4*i+2*j+1}")
        if i & 1: vm.issue(f"buffer_store_dwordx4 {vr(PB+4*(i>>1),4)}, v5, s[56:59], s74 offen offset:{1024*(i>>1)} sc1")
    lg.need("z")
    A(f"v_add_f32 v2, v{Z[0]}, v{Z[1]}")
    vm.issue("buffer_store_dword v2, v4, s[56:59], s75 offen sc1")
    stamp(A, opt, 4)
    rel = opt.get("rel", 1)
    if rel == 0: lds_add(A, 2)
    QB = 112; PQ = [168, 184]; PHQ = [16, 32]
    for y in cvt(QB, Q): A(y)
    weave(A, cvt(QB + 8, Q + 16), [mf(PQ[0], WP, QB, True), mf(PQ[0], WP + 4, QB + 4, False)], 1)
    A(mf(PQ[1], WP, QB + 8, True)); A(mf(PQ[1], WP + 4, QB + 12, False))
    IDC = 64
    for i in range(8): A(f"v_mov_b32 v{IDC+i}, v{ID+i}")
    A("s_lshl_b32 s75, s73, 7"); A(f"s_add_u32 s75, s75, {WS_ZP}")
    A("s_lshl_b32 s76, s38, 11"); A(f"s_add_u32 s76, s76, {WS_FK}"); A("s_lshl_b32 s77, s39, 7"); A("s_add_u32 s77, s77, s76")
    st0, fin0 = softmax_parts(PQ[0], EN[0], T[0], PHQ[0], PHQ[0] + 8, 54, plain or opt.get("plainq"))
    st1, fin1 = softmax_parts(PQ[1], EN[1], T[1], PHQ[1], PHQ[1] + 8, 54, plain or opt.get("plainq"))
    cut = opt.get("sigat", 20)
    zipper(A, st0[:cut], st1[:cut])
    vm.drain(); signal(A, lg, "k_ksig", 9, "s77", 5, 72)
    pass
    zipper(A, st0[cut:], st1[cut:]); zipper(A, fin0, fin1)
    A("v_and_b32 v2, 15, v0"); A("v_lshlrev_b32 v2, 7, v2")
    if rel == 1: lds_add(A, 2)
    A("v_and_b32 v8, 31, v0"); A("v_lshrrev_b32 v9, 4, v8"); A("v_lshlrev_b32 v9, 5, v9")
    A("v_bfe_u32 v10, v8, 2, 1"); A("v_lshl_add_u32 v9, v10, 4, v9"); A("v_bfe_u32 v10, v8, 3, 1"); A("v_lshl_add_u32 v9, v10, 3, v9")
    A("v_and_b32 v10, 3, v8"); A("v_lshl_add_u32 v9, v10, 1, v9")
    A("s_lshl_b32 s70, s42, 7"); A(f"s_add_u32 s70, s70, {X_L+8192}"); A("s_lshl_b32 s71, s43, 6"); A("s_add_u32 s71, s71, s70"); A("v_add_u32 v9, s71, v9")
    A("v_lshrrev_b32 v11, 5, v0"); A("v_lshl_add_u32 v10, v11, 4, s71"); A("v_xor_b32 v11, 64, v10")
    A("s_lshl_b32 s71, s40, 11"); A(f"s_add_u32 s71, s71, {X_L}"); A("v_add_u32 v12, s71, v5")
    A("s_xor_b32 s71, s40, 2"); A("s_lshl_b32 s71, s71, 11"); A(f"s_add_u32 s71, s71, {X_L}"); A("v_add_u32 v13, s71, v5")
    A("s_lshl_b32 s74, s73, 11"); A(f"s_add_u32 s74, s74, {WS_KVP}")
    stamp(A, opt, 5)
    LD = 112; ZL = 48; RED = 80
    wait_flags(A, lg, vm, "k_poll", 10, 4, "s76", 2, 4, opt.get("sleep", 4), 32 if opt.get("stamps") else None)
    stamp(A, opt, 6)
    for i in range(8): vm.issue(f"buffer_load_dword v{ZL+i}, v6, s[56:59], s75 offen offset:{256*i} sc1", ("z", i))
    for r in range(16):
        if not r & 1:
            A(f"s_add_u32 s60, s39, {r>>1}"); A("s_and_b32 s60, s60, 7"); A("s_lshl_b32 s60, s60, 12"); A("s_add_u32 s60, s60, s74")
        for i in range(2):
            vm.issue(f"buffer_load_dwordx4 {vr(LD+8*r+4*i,4)}, v5, s[56:59], s60 offen offset:{(r&1)*2048+1024*i} sc1", (r, i))
    vm.need(("z", 7))
    for i in range(0, 8, 2): A(f"v_add_f32 v{ZL+i}, v{ZL+i}, v{ZL+i+1}")
    A(f"v_add_f32 v{ZL}, v{ZL}, v{ZL+2}"); A(f"v_add_f32 v{ZL+4}, v{ZL+4}, v{ZL+6}"); A(f"v_add_f32 v{ZL}, v{ZL}, v{ZL+4}")
    A(f"v_mov_b32 v{ZL+1}, v{ZL}"); A(f"v_permlane32_swap_b32 v{ZL}, v{ZL+1}"); A(f"v_add_f32 v{ZL}, v{ZL}, v{ZL+1}")
    A(f"v_cvt_pk_bf16_f32 v{ZL}, v{ZL}, v{ZL}")
    lg.issue(f"ds_write_b16 v9, v{ZL}")
    for r in range(16):
        for i in range(2):
            vm.need((r, i))
            x = LD + 8 * r + 4 * i
            A(mf(RED, IDC + 4 * i, x, r == 0 and i == 0))

    lds_add(A, 7)
    stamp(A, opt, 7)
    KF = 96; ZF = 112; NUM = [144, 160]; DEN = [176, 192]; OB = 208
    A("s_lshl_b32 s70, s39, 1"); A("s_add_u32 s70, s70, s43"); A("s_lshl_b32 s70, s70, 17"); A("s_lshl_b32 s71, s44, 11")
    A("s_add_u32 s70, s70, s71"); A(f"s_add_u32 s70, s70, {WS_O}"); A("s_add_u32 s71, s70, 65536")
    for y in cvt(KF, RED): A(y)
    for i in range(2): lg.issue(f"ds_write_b128 v12, {vr(KF+4*i,4)} offset:{1024*i}")
    for t in range(2):
        for b in range(2): A(mf(NUM[b], KF + 4 * t, PHQ[b] + 4 * t, t == 0))
    lg.drain()
    lds_add(A, "s62")
    lds_wait(A, "k_spinC", "s62", 4)
    for s in range(2):
        for t in range(2): lg.issue(f"ds_read_b128 {vr(ZF+8*s+4*t,4)}, v{10+s} offset:{32*t}", ("z", s, t))
    for t in range(2): lg.issue(f"ds_read_b128 {vr(KF+8+4*t,4)}, v13 offset:{1024*t}", ("k", t))
    for s in range(2):
        for t in range(2):
            lg.need(("z", s, t))
            for b in range(2): A(mf(DEN[b], ZF + 8 * s + 4 * t, PHQ[b] + 8 * s + 4 * t, s == 0 and t == 0))
    for b in range(2):
        for t in range(2):
            lg.need(("k", t))
            A(mf(NUM[b], KF + 8 + 4 * t, PHQ[b] + 8 + 4 * t, False))
    for b in range(2):
        A(f"v_add_f32 v{DEN[b]}, 0x358637bd, v{DEN[b]}"); A(f"v_rcp_f32 v{DEN[b]}, v{DEN[b]}")
    A("s_lshl_b32 s75, s39, 4"); A("s_add_u32 s75, s75, s38"); A("s_lshl_b32 s75, s75, 7"); A(f"s_add_u32 s75, s75, {WS_FO}")
    A("s_lshl_b32 s76, s100, 11"); A(f"s_add_u32 s76, s76, {WS_FO}")
    A("v_lshrrev_b32 v8, 5, v0"); A("v_bfe_u32 v9, v0, 2, 2"); A("v_lshl_add_u32 v10, v8, 2, v9"); A("v_lshlrev_b32 v10, 7, v10")
    for b in range(2):
        for i in range(16): A(f"v_mul_f32 v{NUM[b]+i}, v{NUM[b]+i}, v{DEN[b]}")
        for y in cvt(OB + 8 * b, NUM[b]): A(y)
        for t in range(2): vm.issue(f"buffer_store_dwordx4 {vr(OB+8*b+4*t,4)}, v5, s[56:59], s{70+b} offen offset:{1024*t}" + ("" if opt.get("oplain") else " sc1"))
    stamp(A, opt, 8)
    A("v_and_b32 v11, 1, v0"); A("v_lshl_add_u32 v10, v11, 5, v10"); A("v_bfe_u32 v11, v0, 4, 1"); A("v_lshl_add_u32 v10, v11, 4, v10")
    A("v_bfe_u32 v11, v0, 1, 1"); A("v_lshl_add_u32 v10, v11, 3, v10")
    A("v_lshrrev_b32 v9, 1, v9"); A("v_lshl_add_u32 v10, v9, 6, v10"); A("v_xor_b32 v11, 64, v10")
    for k in range(1, 3): A(f"v_add_u32 v{10+2*k}, {65536*k}, v10"); A(f"v_add_u32 v{11+2*k}, {65536*k}, v11")
    A("v_and_b32 v4, 15, v0"); A("v_lshlrev_b32 v4, 7, v4")
    A("s_lshl_b32 s77, s100, 2"); A("s_add_u32 s77, s77, s40"); A("s_lshl_b32 s77, s77, 16"); A(f"s_add_u32 s77, s77, {WS_O}")
    vm.drain()
    signal(A, lg, "k_osig", 11, "s75", 5, 72)
    stamp(A, opt, 9)
    if opt.get("odelay"): A(f"s_sleep {opt['odelay']}")
    lds_wait(A, "k_wo1", 4, 4)
    wait_flags(A, lg, vm, "k_opoll", 12, 4, "s76", 4, 9, opt.get("sleep2", 4))
    A("s_or_b32 s60, s2, s40"); A("s_cmp_eq_u32 s60, 0"); A(f"s_cselect_b32 s60, {WS_EP}, s72")
    A("v_mov_b32 v2, 0"); A("v_mov_b32 v3, s53"); A("s_mov_b64 exec, 1")
    vm.issue("buffer_store_dword v3, v2, s[56:59], s60 offen", "ep"); A("s_mov_b64 exec, -1")
    stamp(A, opt, 10)
    if opt.get("stamps"): A("s_memtime s[98:99]"); A("s_waitcnt lgkmcnt(0)")
    ACC2 = [16, 32]; WF = [48, 56, 64]; OF = 72; D = opt.get("look", 16); RING = D + 2

    def oload(p_):
        if p_ & 3 == 0:
            A(f"s_add_u32 s60, s97, {p_>>2}"); A("s_and_b32 s60, s60, 15"); A("s_lshl_b32 s60, s60, 12"); A("s_add_u32 s60, s60, s77")
        vm.issue(f"buffer_load_dwordx4 {vr(OF+4*(p_%RING),4)}, v5, s[56:59], s60 offen offset:{1024*(p_&3)} sc1", ("o", p_))

    def wreads(p_):
        base = UNIT[p_ >> 2] + 2048 * (p_ & 3); fs = p_ % 3
        for nb in range(2):
            for j in range(2):
                a = base + 1024 * j
                lg.issue(f"ds_read_b64_tr_b16 {vr(WF[fs]+4*nb+2*j,2)}, v{10+2*(a>>16)+nb} offset:{a&65535}", ("w", fs, nb))
    for p_ in range(D): oload(p_)
    wreads(0); wreads(1)
    for p_ in range(64):
        fs = p_ % 3
        if opt.get("g2st") and p_ in (0, 1, 16, 32): stamp(A, opt, {0: 1, 1: 2, 16: 3, 32: 4}[p_])
        if p_ + 2 == 44:
            if opt.get("g2st"): stamp(A, opt, 5)
            lg.drain(); lds_wait(A, "k_wo2", 5, 4)
            if opt.get("g2st"): stamp(A, opt, 6)
        if p_ + D == 64 and opt.get('ygate', 1): lg.drain(); lds_add(A, 8)
        if p_ < 62: wreads(p_ + 2)
        vm.need(("o", p_))
        for nb in range(2):
            lg.need(("w", fs, nb))
            A(mf(ACC2[nb], WF[fs] + 4 * nb, OF + 4 * (p_ % RING), p_ == 0))
            if nb == 0 and p_ + D < 64: oload(p_ + D)
    stamp(A, opt, 11)
    if opt.get("g2st"): A("s_memtime s[94:95]"); A("s_waitcnt lgkmcnt(0)"); A("s_sub_u32 s33, s94, s98")
    srd(A, 4, 30, 0x800000)
    A("s_lshl_b32 s64, s40, 12"); A(f"s_add_u32 s64, s64, {X_L}")
    A("v_and_b32 v13, 31, v0"); A("v_lshl_add_u32 v14, v13, 7, s64"); A("v_and_b32 v13, 7, v13"); A("v_lshlrev_b32 v15, 1, v8"); A("v_xor_b32 v13, v13, v15")
    A("v_lshrrev_b32 v1, 3, v0"); A("v_and_b32 v2, 7, v0")
    for nb in range(2):
        for y in cvt(64 + 8 * nb, ACC2[nb]): A(y)
        for i in range(2):
            A(f"v_xor_b32 v15, {4*nb+i}, v13"); A("v_lshl_add_u32 v15, v15, 4, v14")
            lg.issue(f"ds_write_b128 v15, {vr(64+8*nb+4*i,4)}")
    A("v_xor_b32 v13, v1, v2"); A("v_lshlrev_b32 v13, 4, v13"); A("v_lshl_add_u32 v13, v1, 7, v13"); A("v_add_u32 v13, s64, v13")
    A("s_lshl_b32 s64, s100, 19"); A("s_lshl_b32 s65, s40, 17"); A("s_add_u32 s64, s64, s65"); A("s_lshl_b32 s65, s101, 7"); A("s_add_u32 s64, s64, s65")
    A("v_lshlrev_b32 v14, 12, v1"); A("v_lshl_add_u32 v14, v2, 4, v14")
    lg.drain()
    for k in range(4): lg.issue(f"ds_read_b128 {vr(80+4*k,4)}, v13 offset:{1024*k}", k)
    om = {0: "", 1: " sc1", 2: " nt", 3: " sc0 sc1"}[opt.get("ost", 0)]
    for k in range(4):
        lg.need(k)
        A(f"buffer_store_dwordx4 {vr(80+4*k,4)}, v14, s[4:7], s64 offen" + om)
        if k < 3: A("s_add_u32 s64, s64, 32768")
    if opt.get("stamps"):
        A("s_waitcnt vmcnt(0)"); stamp(A, opt, 12); write_stamps(A)
    A("s_endpgm")


def first_use(order, k):
    n = sum(order[k])
    return all(sum(o) != n for o in order[:k])


def part_s(A, opt):
    lg = Cnt(A, "lgkmcnt"); vm = Cnt(A, "vmcnt")
    A("s_sub_u32 s41, s40, 4")
    A("v_lshrrev_b32 v1, 3, v0"); A("s_lshl_b32 s42, s41, 5"); A("v_add_u32 v5, s42, v1"); A("v_lshlrev_b32 v5, 11, v5")
    A("v_and_b32 v2, 7, v0"); A("v_lshrrev_b32 v3, 4, v0")
    for i in range(4):
        A(f"v_xor_b32 v4, {4*(i&1)}, v3"); A("v_xor_b32 v4, v4, v2"); A("v_lshl_add_u32 v4, v4, 4, v5")
        A(f"v_add_u32 v{8+i}, {16384*i-1024*i}, v4")
    A("s_lshl_b32 s42, s41, 4"); A("v_add_u32 v19, s42, v1"); A("v_mul_u32_u24 v5, 6144, v19"); A("s_lshl_b32 s42, s38, 7"); A("v_add_u32 v5, s42, v5")
    A("v_bfe_u32 v3, v0, 4, 1"); A("v_lshlrev_b32 v4, 2, v3"); A("v_xor_b32 v6, v4, v2"); A("v_lshl_add_u32 v4, v6, 4, v5")
    for half in range(2):
        for g in range(3):
            idx = 2 * g + half
            A(f"v_add_u32 v{12+idx}, {half*8*6144+g*2048-1024*(idx&3)}, v4")
    A("s_lshl_b32 s43, s41, 12"); A("s_mul_i32 s44, s41, 6144"); A(f"s_add_u32 s44, s44, {WOFF}")
    A("s_lshr_b32 s45, s37, 2"); A("s_add_u32 s45, s45, s37")
    A("s_lshl_b32 s46, s39, 18")
    A("s_waitcnt lgkmcnt(0)")
    if opt.get("stamps"): A("s_mov_b32 s80, s94")
    srd(A, 48, 4, 0x40000, add="s46"); srd(A, 64, 6, 0x600000)

    def issue(i):
        buf = (i % 3) * STAGE
        P = opt.get("P", 4)
        A(f"s_add_u32 s60, s45, {i&(P-1)}"); A(f"s_and_b32 s60, s60, {P-1}")
        if i & (16 - P): A(f"s_or_b32 s60, s60, {i&(16-P)}")
        A("s_lshl_b32 s61, s60, 7"); A(f"s_mul_i32 s62, s60, {64*6144}")
        A(f"s_add_u32 m0, s43, {buf}")
        for k in range(4): vm.issue(f"buffer_load_dwordx4 v{8+k}, s[48:51], s61 offen offset:{1024*k} lds", ("st", i))
        A(f"s_add_u32 m0, s44, {buf}")
        for k in range(4): vm.issue(f"buffer_load_dwordx4 v{12+k}, s[64:67], s62 offen offset:{1024*k} lds", ("st", i))
        A(f"s_add_u32 m0, s44, {buf+4096}")
        for k in range(2): vm.issue(f"buffer_load_dwordx4 v{16+k}, s[64:67], s62 offen offset:{1024*k} lds", ("st", i))

    A("s_lshl_b32 s47, s36, 5"); A("s_add_u32 s47, s47, s37"); A("s_lshl_b32 s47, s47, 2"); A("s_add_u32 s47, s47, s41")
    A("v_and_b32 v18, 31, v0"); A("s_lshl_b32 s60, s47, 8"); A("v_lshl_add_u32 v4, v18, 3, s60"); A("s_lshl_b32 s60, s47, 1"); A("v_mov_b32 v5, s60")
    issue(0)
    vm.issue("global_load_ushort v234, v5, s[26:27]", "par")
    for a in range(6): vm.issue(f"global_load_dword v{228+a}, v4, s[{14+2*a}:{15+2*a}] offset:4", "par")
    vm.issue("global_load_ushort v22, v5, s[28:29]", "par")
    A("s_lshl_b32 s20, s69, 18"); A("s_lshl_b32 s71, s68, 7"); A("s_add_u32 s20, s20, s71"); A("s_lshl_b32 s71, s41, 16"); A("s_add_u32 s20, s20, s71")
    A("v_lshlrev_b32 v24, 11, v1"); A("v_lshl_add_u32 v24, v2, 4, v24")
    A("s_lshl_b32 s21, s41, 12"); A(f"s_add_u32 s21, s21, {UT_L}")
    srd(A, 24, 12, 0x400000); A("s_mov_b32 m0, s21")
    for k in range(4):
        vm.issue(f"buffer_load_dwordx4 v24, s[24:27], s20 offen offset:{1024*k} lds", "uin")
        if k < 3: A(f"s_add_u32 s20, s20, {16384-1024}")
    A("s_setprio 3")
    A("v_lshrrev_b32 v3, 5, v0")
    ident(A, 18, 3, 236)
    UIN = 128; KD = 108; HF = "s[72:73]"
    epoch(A)
    srd(A, 56, 34, WS_SIZE)
    A("v_lshrrev_b32 v39, 4, v0"); A("v_bfe_u32 v4, v0, 2, 2"); A("v_lshl_add_u32 v4, v39, 3, v4"); A("v_lshlrev_b32 v4, 7, v4")
    A("v_and_b32 v40, 3, v0"); A("v_lshl_add_u32 v4, v40, 3, v4"); A("v_add_u32 v25, s21, v4")
    A("v_and_b32 v4, 15, v0"); A("v_lshlrev_b32 v26, 12, v4"); A("v_lshl_add_u32 v26, v39, 4, v26")
    A("s_lshl_b32 s70, s68, 18"); A("s_lshl_b32 s71, s69, 8"); A("s_add_u32 s70, s70, s71"); A("s_lshl_b32 s71, s41, 6"); A("s_add_u32 s70, s70, s71")
    if WS_UT: A(f"s_add_u32 s70, s70, {WS_UT}")
    A("s_lshl_b32 s60, s2, 2"); A("s_add_u32 s60, s60, s41"); A("s_lshl_b32 s61, s60, 7"); A("s_lshl_b32 s60, s60, 11"); A("v_lshl_add_u32 v35, v4, 7, s60")
    A(f"s_add_u32 s61, s61, {WS_FK}"); A("v_mov_b32 v34, s61")
    A("v_lshlrev_b32 v19, 11, v19"); A("v_lshl_add_u32 v19, v6, 4, v19"); A("s_lshl_b32 s42, s101, 7"); A("v_add_u32 v19, s42, v19"); A(f"v_add_u32 v20, {16384-1024}, v19")
    A(f"s_mul_i32 s74, s41, {TBL}"); A(f"s_add_u32 s74, s74, {TB_L}")
    A("s_mul_i32 s63, s41, 4608"); A(f"s_add_u32 s63, s63, {U_L}")
    A("v_lshrrev_b32 v3, 5, v0"); A(f"v_cmp_eq_u32 {HF}, 1, v3")
    A("v_cmp_eq_u32 vcc, 0, v0"); A("v_lshlrev_b32 v5, 4, v0")
    A("s_lshl_b32 s60, s41, 12"); A(f"s_add_u32 s60, s60, {KD_L}"); A("v_add_u32 v21, s60, v5")
    A("v_min_u32 v36, 29, v0"); A("v_lshl_add_u32 v36, v36, 4, s63"); A("v_add_u32 v37, s63, v5"); A("v_lshlrev_b32 v38, 7, v4")
    A("s_lshl_b32 s22, s68, 11"); A(f"s_add_u32 s22, s22, {WS_FU}"); A("s_lshl_b32 s23, s69, 7"); A("s_add_u32 s23, s23, s22")
    for i in range(4): A(f"v_mov_b32 v{28+i}, 0")
    srd(A, 8, 10, 0x200000); A("s_lshl_b32 s3, s41, 11")

    def wo_groups(gs, regs=None):
        for n, g in enumerate(gs):
            if g >= opt.get("thr_from", 4) and len(vm.q) > opt.get("thr", 4):
                A(f"s_waitcnt vmcnt({opt.get('thr', 4)})"); vm.q = vm.q[len(vm.q) - opt.get("thr", 4):] if opt.get("thr", 4) else []
            A(f"s_add_u32 s60, s97, {g}"); A("s_and_b32 s60, s60, 15"); A("s_lshl_b32 s60, s60, 17")
            if regs is None:
                A(f"s_add_u32 m0, s3, {UNIT[g]}")
                for j in range(2): vm.issue(f"buffer_load_dwordx4 v{19+j}, s[8:11], s60 offen offset:{1024*j} lds", ("wo", g))
            else:
                for j in range(2): vm.issue(f"buffer_load_dwordx4 {vr(regs+8*n+4*j,4)}, v{19+j}, s[8:11], s60 offen offset:{1024*j}", ("wo", g))

    A("s_waitcnt lgkmcnt(0)"); A("s_add_u32 s53, s53, 1")
    A("s_setprio 0")
    issue(1)
    vm.need(("st", 0)); A("s_barrier")
    issue(2)
    if not opt.get("nowot"): vm.issue("buffer_load_dword v23, v35, s[8:11], 0 offen", "wot")
    if not opt.get("noft"): vm.issue("buffer_load_dword v23, v34, s[56:59], 0 offen", "wot")
    stamp(A, opt, 1, True)
    for i in range(4): lg.issue(f"ds_read_b128 {vr(KD+4*i,4)}, v21 offset:{1024*i}")
    for i in range(13):
        vm.need(("st", i + 1)); A("s_barrier")
        if opt.get("steps"): A("s_memrealtime s[94:95]")
        issue(i + 3)
        if opt.get("steps"): A("s_waitcnt lgkmcnt(0)"); A(f"s_mov_b32 s{82+i}, s94")
        if i == 0: A("v_lshlrev_b32 v22, 16, v22"); A("v_cndmask_b32 v22, 0, v22, vcc")
        if i == 1:
            vm.need("uin")
            for cq in range(4):
                for j in range(2): lg.issue(f"ds_read_b64_tr_b16 {vr(UIN+4*cq+2*j,2)}, v25 offset:{512*j+32*cq}", cq)
        if i == 2: lg.drain()
    if opt.get("sp", 2): A(f"s_setprio {opt.get('sp', 2)}")
    A("s_lshl_b32 s75, s47, 12"); A(f"s_add_u32 s76, s75, {WS_UT}")
    WR = 188; WE = 144
    vm.need(("st", 14)); A("s_barrier")
    for cq in range(4):
        vm.issue(f"buffer_store_dwordx4 {vr(UIN+4*cq,4)}, v26, s[56:59], s70 offen sc1", "uout")
        if cq < 3: A("s_add_u32 s70, s70, 65536")
    wo_groups(range(2))
    A(f"v_mov_b32 v1, {CNT_L}")
    for i in range(5): lg.issue(f"ds_write_b128 v1, v[28:31] offset:{16*i}")
    lg.drain()
    vm.need(("st", 15)); A("s_barrier")
    stamp(A, opt, 3, True)
    wo_groups(range(2, 4))
    vm.need("uout")
    stamp(A, opt, 12, True)
    signal(A, lg, "k_usig", 13, "s23", 5, 40)
    wo_groups(range(4, 6)); wo_groups(range(6, 11), WE)
    if opt.get("wlate", 9) == 9: wo_groups(range(11, 16), WR)
    lg.issue("ds_write_b128 v36, v[28:31]")
    lg.drain()
    lds_wait(A, "k_ldone", 3, 4)
    A("v_add_u32 v39, s3, v5")
    for n, g in enumerate(range(6, 11)):
        vm.need(("wo", g))
        for j in range(2): lg.issue(f"ds_write_b128 v39, {vr(WE+8*n+4*j,4)} offset:{UNIT[g]+1024*j}")
    vm.drain()
    wait_flags(A, lg, vm, "k_utpoll", 14, 4, "s22", 38, 44, 8)
    stamp(A, opt, 10, True)
    for i in range(4): vm.issue(f"buffer_load_dwordx4 {vr(UIN+4*i,4)}, v5, s[56:59], s76 offen offset:{1024*i} sc1", "u")
    lg.drain()
    lds_add(A, 4)
    vm.need("u")
    for i in range(4): lg.issue(f"ds_write_b128 v37, {vr(UIN+4*i,4)} offset:{480+1024*i}")
    lg.drain()
    stamp(A, opt, 4, True)
    lds_wait(A, "k_hold", 2, 4, sleep=1)
    stamp(A, opt, 11, True)
    if opt.get("sp", 2): A("s_setprio 0")
    kgen(A, "k_s", opt, 0, lambda: None, 228, 234, 236, 244, 44, KD, [76, 92], [124, 140], [156, 172], HF)
    stamp(A, opt, 2, True)
    d = lambda a, b: KD + 4 * a + b
    A("v_add_u32 v4, 31, v0"); A("v_subrev_u32 v2, 32, v0"); A(f"v_cndmask_b32 v4, v4, v2, {HF}"); A("v_lshlrev_b32 v4, 2, v4")
    lg.issue(f"ds_bpermute_b32 v44, v4, v{d(0,3)}", "prev")
    A(f"v_add_f32 v{d(0,0)}, v{d(0,0)}, v22")
    A(f"v_readlane_b32 s78, v{d(0,3)}, 63")
    A("v_lshl_add_u32 v2, v18, 5, s74"); A("v_lshl_add_u32 v4, v3, 4, v2")
    A("v_lshl_add_u32 v2, v3, 10, v2")
    A("v_and_b32 v1, 15, v0"); A("v_lshl_add_u32 v1, v1, 2, s74"); A("v_mov_b32 v45, 0")
    lg.issue("ds_write_b32 v1, v45")
    A("v_cmp_eq_u32 vcc, 0, v0"); A("v_and_b32 v1, 1, v0"); A("v_cmp_eq_u32 s[70:71], 1, v1")
    A("v_mov_b32 v46, s78"); A(f"v_cndmask_b32 v46, v{d(1,0)}, v46, vcc")
    q = 48
    A(f"v_cvt_pk_bf16_f32 v{q}, v{d(1,0)}, v46"); A(f"v_cvt_pk_bf16_f32 v{q+1}, v{d(1,0)}, v{d(1,0)}")
    A(f"v_cvt_pk_bf16_f32 v{q+2}, v{d(1,1)}, v{d(1,0)}"); A(f"v_cvt_pk_bf16_f32 v{q+3}, v{d(1,2)}, v{d(1,1)}")
    lg.issue(f"ds_write_b128 v4, {vr(q,4)} offset:{(16+256)*4}")
    for k in range(2):
        a, b = d(2, 2 * k), d(2, 2 * k + 1); q = 52 + 4 * k
        A(f"v_cvt_pk_bf16_f32 v{q}, v{a}, v{a}"); A(f"v_cvt_pk_bf16_f32 v{q+3}, v{b}, v{a}"); A(f"v_cvt_pk_bf16_f32 v47, v{b}, v{b}")
        A(f"v_mov_b32 v{q+1}, v{q}"); A(f"v_cndmask_b32 v{q+2}, v{q}, v{q+3}, {HF}"); A(f"v_cndmask_b32 v{q+3}, v{q+3}, v47, {HF}")
        lg.issue(f"ds_write_b128 v4, {vr(q,4)} offset:{(16+512+256*k)*4}")
    for k in range(2):
        a, b = d(3, 2 * k), d(3, 2 * k + 1); q = 60 + 8 * k
        A(f"v_permlane32_swap_b32 v{a}, v{b}")
        A(f"v_cvt_pk_bf16_f32 v{q}, v{a}, v{a}"); A(f"v_cvt_pk_bf16_f32 v47, v{b}, v{a}"); A(f"v_cvt_pk_bf16_f32 v{q+6}, v{b}, v{b}")
        for j in range(1, 4): A(f"v_mov_b32 v{q+j}, v{q}")
        A(f"v_mov_b32 v{q+7}, v{q+6}")
        A(f"v_cndmask_b32 v{q+4}, v{q}, v47, s[70:71]"); A(f"v_cndmask_b32 v{q+5}, v47, v{q+6}, s[70:71]")
        lg.issue(f"ds_write_b128 v2, {vr(q,4)} offset:{(16+1024+512*k)*4}")
        lg.issue(f"ds_write_b128 v2, {vr(q+4,4)} offset:{(16+1024+512*k)*4+16}")
    lg.need("prev")
    A("v_cndmask_b32 v44, v44, v45, vcc")
    q = 76
    A(f"v_cvt_pk_bf16_f32 v{q}, v{d(0,0)}, v44")
    for j in range(1, 4): A(f"v_cvt_pk_bf16_f32 v{q+j}, v{d(0,j)}, v{d(0,j-1)}")
    lg.issue(f"ds_write_b128 v4, {vr(q,4)} offset:64")
    AB = 8; BB = 16
    A("v_and_b32 v17, 15, v0"); A("v_lshrrev_b32 v2, 4, v0")
    A("v_lshlrev_b32 v4, 3, v2"); A("v_sub_u32 v4, v17, v4"); A("v_add_u32 v4, 26, v4"); A(f"v_lshl_add_u32 v{AB}, v4, 2, s74")
    for k in range(1, 8): A(f"v_add_u32 v{AB+k}, {1024*k}, v{AB}")
    A(f"v_lshlrev_b32 v4, 5, v17"); A("v_lshl_add_u32 v4, v2, 4, v4"); A(f"v_add_u32 v{BB}, s63, v4")
    lg.drain()
    stamp(A, opt, 5, True)
    Y = 24; FA = [56, 120]; FB = [88, 152]

    def creads(s0):
        fs = s0 & 1; R = []
        for k in range(8):
            a = FA[fs] + 4 * k; b = FB[fs] + 4 * k
            R.append((f"ds_read_b128 {vr(b,4)}, v{BB} offset:{448-64*s0+512*k}", ("b", fs, k)))
            R.append((f"ds_read2_b32 {vr(a,2)}, v{AB+k} offset0:{32*s0+6} offset1:{32*s0+4}", ("a", fs, k)))
            R.append((f"ds_read2_b32 {vr(a+2,2)}, v{AB+k} offset0:{32*s0+2} offset1:{32*s0}", ("a", fs, k)))
        return R
    for r, tg in creads(0): lg.issue(r, tg)
    for s0 in range(8 if not opt.get("noconv") else 1):
        fs = s0 & 1; R = creads(s0 + 1) if s0 < 7 else []; ri = 0
        order = [(s1, nu) for m in range(8) for (s1, nu) in ([(m, x) for x in range(m + 1)] + [(x, m) for x in range(m)]) if s1 + nu < 8]
        for k, (s1, nu) in enumerate(order):
            n = s1 + nu
            lg.need({("a", fs, s1), ("b", fs, nu)})
            first = (s0 == 0 and first_use(order, k))
            A(f"{MF16} {vr(Y+4*n,4)}, {vr(FA[fs]+4*s1,4)}, {vr(FB[fs]+4*nu,4)}, " + ("0" if first else vr(Y + 4 * n, 4)))
            if k >= 8 and ri < len(R): lg.issue(*R[ri]); ri += 1
        while ri < len(R): lg.issue(*R[ri]); ri += 1
        if s0 == opt.get("wlate", 9): wo_groups(range(11, 16), WR)
    if opt.get("sp", 2): A(f"s_setprio {opt.get('sp', 2)}")
    lg.drain()
    lds_add(A, 6)
    stamp(A, opt, 6, True)
    A("v_and_b32 v4, 1, v2"); A("v_lshlrev_b32 v4, 9, v4"); A("v_lshl_add_u32 v4, v17, 5, v4"); A("v_lshrrev_b32 v2, 1, v2"); A("v_lshl_add_u32 v4, v2, 4, v4")
    A(f"s_add_u32 s76, s75, {WS_YT}")
    for k in range(4):
        q = 56 + 4 * k
        for j in range(2):
            A(f"v_cvt_pk_bf16_f32 v{q+2*j}, v{Y+8*k+4*j}, v{Y+8*k+4*j+1}"); A(f"v_cvt_pk_bf16_f32 v{q+2*j+1}, v{Y+8*k+4*j+2}, v{Y+8*k+4*j+3}")
    for k in range(4):
        q = 56 + 4 * k
        A(f"v_permlane16_swap_b32 v{q}, v{q+2}"); A(f"v_permlane16_swap_b32 v{q+1}, v{q+3}")
    A("v_add_u32 v2, s3, v5")
    lds_wait(A, "k_cdone", 6, 4, sleep=1)
    pass
    vm.drain()
    for n, g in enumerate(range(11, 16)):
        if UNIT[g] >= 65536 and UNIT[g - 1] < 65536: A("v_add_u32 v2, 0x10000, v2")
        for j in range(2): lg.issue(f"ds_write_b128 v2, {vr(WR+8*n+4*j,4)} offset:{(UNIT[g]&65535)+1024*j}")
    lg.drain()
    lds_add(A, 5)
    stamp(A, opt, 7, True)
    if opt.get("ggate", 1): lds_wait(A, "k_gdone", 7, 4, sleep=1)
    for k in range(4):
        q = 56 + 4 * k
        vm.issue(f"buffer_store_dwordx4 {vr(q,4)}, v4, s[56:59], s76 offen offset:{1024*k} sc1", "ys")
    A(f"s_add_u32 s23, s23, {WS_FY-WS_FU}"); A(f"s_add_u32 s22, s22, {WS_FY-WS_FU}")
    vm.drain()
    stamp(A, opt, 13, True)
    signal(A, lg, "k_ysig", 15, "s23", 5, 40)
    A("s_cmp_ge_u32 s41, 2" if not opt.get("noytile") else "s_cmp_ge_u32 s41, 0"); A("s_cbranch_scc1 k_sdone")
    YIN = 24; YOUT = 56
    srd(A, 4, 30, 0x800000)
    A("v_lshrrev_b32 v1, 3, v0"); A("v_and_b32 v2, 7, v0"); A("v_mov_b32 v20, v1"); A("v_and_b32 v4, 15, v0"); A("v_lshlrev_b32 v4, 7, v4")
    A("s_lshl_b32 s64, s68, 18"); A("s_lshl_b32 s65, s69, 8"); A("s_add_u32 s64, s64, s65"); A("s_lshl_b32 s65, s41, 7"); A("s_add_u32 s64, s64, s65"); A(f"s_add_u32 s64, s64, {WS_YT}")
    A("v_lshlrev_b32 v18, 15, v1"); A("v_lshl_add_u32 v18, v2, 4, v18")
    A("s_lshl_b32 s66, s69, 19"); A("s_lshl_b32 s65, s41, 18"); A("s_add_u32 s66, s66, s65"); A("s_lshl_b32 s65, s68, 7"); A("s_add_u32 s66, s66, s65"); A("s_add_u32 s66, s66, 2048")
    A("v_lshlrev_b32 v19, 15, v2"); A("v_lshl_add_u32 v19, v1, 4, v19")
    A("s_mov_b32 s70, 0x05040100"); A("s_mov_b32 s71, 0x07060302")
    if opt.get("ygate", 1): lds_wait(A, "k_ygate", 8, 4, sleep=2)
    wait_flags(A, lg, vm, "k_ypoll", 16, 2, "s22", 4, 9, 8)
    stamp(A, opt, 8, True)
    for c in range(8):
        vm.issue(f"buffer_load_dwordx4 {vr(YIN+4*c,4)}, v18, s[56:59], s64 offen sc1", "y")
        if c < 7: A("s_add_u32 s64, s64, 4096")
    vm.need("y")
    om = {0: "", 1: " sc1", 2: " nt", 3: " sc0 sc1"}[opt.get("ost", 0)]
    for c in range(8):
        for k in range(4): A(f"v_perm_b32 v{YOUT+4*c+k}, v{YIN+4*(2*k+1)+(c>>1)}, v{YIN+4*(2*k)+(c>>1)}, s{70+(c&1)}")
        A(f"buffer_store_dwordx4 {vr(YOUT+4*c,4)}, v19, s[4:7], s66 offen" + om)
        if c < 7: A("s_add_u32 s66, s66, 4096")
    A("k_sdone:")
    if opt.get("stamps"):
        A("s_waitcnt vmcnt(0)"); stamp(A, opt, 9, True); write_stamps(A)


HEADER = """; Hedgehog linear attention (QKV GEMM, feature maps, kv/z all-reduce, output GEMM) + S4 long convolution, one launch.
; Kernarg (128 bytes of pointers): x, wqkv, w_phi, wo, u, A_re, A_im, B_re, B_im, C_re, C_im, log_dt, Dskip, out, debug, ws
; waves 0-3: matrix work of the attention branch; waves 4-7: tile loading, SSM kernel generation, convolution""".split("\n")


def build(opt):
    t = assemble_file([(KNAME, 256, 512, 163840, kernel(opt), 256, None)], header=HEADER, align=not opt.get('noalign'))
    if not opt.get("list"): t = t.replace(f"; @launch kernel={KNAME} grid", "; @launch grid")
    return t


if __name__ == "__main__":
    opt = {}
    for a in sys.argv[2:]:
        k, _, v = a.partition("="); opt[k] = int(v) if v else 1
    open(sys.argv[1], "w").write(build(opt))
```

```python
import sys, re
from asmgen import *

KNAME = "concat_heads__linear_kernel_hedgehog__ssm_conv_s4__prompt_kernel"
WS_UT = 0x0000000
WS_YT = 0x0400000
WS_O = 0x0800000
WS_KVP = 0x0C00000
WS_ZP = 0x0E00000
WS_FK = 0x0E40000
WS_FO = 0x0E48000
WS_FU = 0x0E50000
WS_FY = 0x0E58000
WS_EP = 0x0EC0000
WS_DBG = 0x1000000
WS_SIZE = 0x10000000

STAGE = 40960
WOFF = 16384
NST = 16
TBL = 9216
TB_L = 40960
X_L = 77824
U_L = 95232
WPHI_L = 122880
UT_L = 126976
KD_L = 143360
CNT_L = 77728
UNIT = [122880 + 8192 * i for i in range(5)] + [113664] + [8192 * i for i in range(5)] + [40960 + 8192 * i for i in range(4)] + [95232]
LOG2E = 0x3FB8AA3B
INV2PI = 0x3E22F983
OOB = 0x7F000000
SPIN = 0x100000
MF32 = "v_mfma_f32_32x32x16_bf16"
MF16 = "v_mfma_f32_16x16x32_bf16"


def vr(a, n=1):
    return f"v{a}" if n == 1 else f"v[{a}:{a+n-1}]"


def cmul(r, z, w, plain=False):
    if plain:
        return [f"v_mul_f32 v{r}, v{z}, v{w}\nv_mul_f32 v{r+1}, v{z+1}, v{w}",
                f"v_fma_f32 v{r}, -v{z+1}, v{w+1}, v{r}\nv_fmac_f32 v{r+1}, v{z}, v{w+1}"]
    return [f"v_pk_mul_f32 {vr(r,2)}, {vr(z,2)}, {vr(w,2)} op_sel_hi:[1,0]",
            f"v_pk_fma_f32 {vr(r,2)}, {vr(z,2)}, {vr(w,2)}, {vr(r,2)} op_sel:[1,1,0] op_sel_hi:[0,1,1] neg_lo:[1,0,0]"]


def unpk(t):
    if not t.startswith("v_pk_"): return [t]
    mm = re.match(r"v_pk_(\w+)_f32 (.*)", t); op = mm.group(1)
    regs = re.findall(r"([vs])\[(\d+):\d+\]", mm.group(2)); neg = "neg_lo" in t
    hi = re.search(r"op_sel_hi:\[([\d,]+)\]", t); hi = [int(x) for x in hi.group(1).split(",")] if hi else [1, 1, 1]
    R = []
    for h in range(2):
        o = [f"{regs[0][0]}{int(regs[0][1])+h}"] + [f"{k}{int(n)+(h if hi[i] else 0)}" for i, (k, n) in enumerate(regs[1:])]
        if neg: o[1] = "-" + o[1]
        R.append(f"v_{op}_f32 " + ", ".join(o))
    return R


def srd(A, d, base, size, add=None):
    if add is None:
        A(f"s_mov_b32 s{d}, s{base}"); A(f"s_mov_b32 s{d+1}, s{base+1}")
    else:
        A(f"s_add_u32 s{d}, s{base}, {add}"); A(f"s_addc_u32 s{d+1}, s{base+1}, 0")
    A(f"s_mov_b32 s{d+2}, {size}"); A(f"s_mov_b32 s{d+3}, 0x20000")


def stamp(A, opt, k, s=False):
    if opt.get("stamps") and not (s and opt.get("steps") and k >= 2):
        A("s_memrealtime s[94:95]"); A("s_waitcnt lgkmcnt(0)"); A(f"s_mov_b32 s{80+k}, s94")


def write_stamps(A):
    A("s_lshl_b32 s70, s2, 3"); A("s_add_u32 s70, s70, s40"); A("s_lshl_b32 s70, s70, 6"); A(f"s_add_u32 s70, s70, {WS_DBG}")
    for i in range(16): A(f"v_mov_b32 v{16+i}, s{80+i}")
    A("v_mov_b32 v32, s32"); A("v_mov_b32 v33, s33"); A("v_mov_b32 v12, s70")
    A("v_add_u32 v13, 0x40000, v12"); A("global_store_dwordx2 v13, v[32:33], s[34:35]")
    for i in range(4): A(f"global_store_dwordx4 v12, {vr(16+4*i,4)}, s[34:35] offset:{16*i}")


def softmax_parts(P, En, T, o0, o1, sL, plain):
    m, nm = T, T + 2
    R = []; A = R.append
    A(f"v_max3_f32 v{m}, v{P}, v{P+1}, v{P+2}")
    A(f"v_max3_f32 v{nm}, -v{P}, -v{P+1}, -v{P+2}")
    for i in range(3, 15, 2):
        A(f"v_max3_f32 v{m}, v{m}, v{P+i}, v{P+i+1}")
        A(f"v_max3_f32 v{nm}, v{nm}, -v{P+i}, -v{P+i+1}")
    A(f"v_max_f32 v{m}, v{m}, v{P+15}")
    A(f"v_max_f32_e64 v{nm}, v{nm}, -v{P+15}")
    A(f"v_permlane32_swap_b32 v{m}, v{nm}")
    A(f"v_max_f32 v{m}, v{m}, v{nm}")
    A(f"v_mul_f32 v{m}, {hex(LOG2E | 0x80000000)}, v{m}")
    A(f"v_mov_b32 v{nm}, v{m}")
    A(f"v_permlane32_swap_b32 v{m}, v{nm}")
    for i in range(0, 16, 2):
        A(f"v_pk_fma_f32 {vr(En+i,2)}, {vr(P+i,2)}, s[{sL}:{sL+1}], {vr(nm,2)} op_sel_hi:[1,1,0] neg_lo:[1,0,0] neg_hi:[1,0,0]")
        A(f"v_pk_fma_f32 {vr(P+i,2)}, {vr(P+i,2)}, s[{sL}:{sL+1}], {vr(m,2)} op_sel_hi:[1,1,0]")
    for i in range(16):
        A(f"v_exp_f32 v{En+i}, v{En+i}")
        A(f"v_exp_f32 v{P+i}, v{P+i}")
    A(f"v_pk_add_f32 {vr(nm,2)}, {vr(En,2)}, {vr(En+2,2)}")
    A(f"v_pk_add_f32 {vr(m,2)}, {vr(P,2)}, {vr(P+2,2)}")
    for i in range(4, 16, 2):
        A(f"v_pk_add_f32 {vr(nm,2)}, {vr(nm,2)}, {vr(En+i,2)}")
        A(f"v_pk_add_f32 {vr(m,2)}, {vr(m,2)}, {vr(P+i,2)}")
    A(f"v_add_f32 v{nm}, v{nm}, v{nm+1}")
    A(f"v_add_f32 v{m}, v{m}, v{m+1}")
    A(f"v_permlane32_swap_b32 v{m}, v{nm}")
    A(f"v_add_f32 v{m}, v{m}, v{nm}")
    A(f"v_rcp_f32 v{m}, v{m}")
    A(f"v_mov_b32 v{nm}, v{m}")
    A(f"v_permlane32_swap_b32 v{m}, v{nm}")
    stats = R; R = []; A = R.append
    for src, r, o in ((En, nm, o1), (P, m, o0)):
        for i in range(0, 16, 2): A(f"v_pk_mul_f32 {vr(src+i,2)}, {vr(src+i,2)}, {vr(r,2)} op_sel_hi:[1,0]")
        for i in range(8): A(f"v_cvt_pk_bf16_f32 v{o+i}, v{src+2*i}, v{src+2*i+1}")
    if plain:
        stats = [y for x in stats for y in unpk(x)]; R = [y for x in R for y in unpk(x)]
    return stats, R


def zipper(A, a, b):
    for i in range(max(len(a), len(b))):
        if i < len(a): A(a[i])
        if i < len(b): A(b[i])


def weave(A, main, extra, start=0):
    n = len(main) - start; done = 0
    for i, x in enumerate(main):
        A(x)
        if i >= start:
            upto = (len(extra) * (i - start + 1) + n - 1) // n
            while done < min(upto, len(extra)): A(extra[done]); done += 1


def lds_add(A, cnt):
    A(f"v_mov_b32 v1, {CNT_L+4*cnt}" if isinstance(cnt, int) else f"v_mov_b32 v1, {cnt}")
    A("v_mov_b32 v7, 1"); A("s_mov_b64 exec, 1"); A("ds_add_u32 v1, v7"); A("s_mov_b64 exec, -1")


def lds_wait(A, name, cnt, target, sleep=0):
    A(f"v_mov_b32 v1, {CNT_L+4*cnt}" if isinstance(cnt, int) else f"v_mov_b32 v1, {cnt}")
    A(f"s_mov_b32 s79, {SPIN}")
    A(f"{name}:")
    A("ds_read_b32 v7, v1")
    A("s_sub_u32 s79, s79, 1"); A(f"s_cbranch_scc1 {name}_x")
    A("s_waitcnt lgkmcnt(0)")
    A("v_readfirstlane_b32 s78, v7"); A(f"s_cmp_ge_u32 s78, {target}"); A(f"s_cbranch_scc1 {name}_x")
    if sleep: A(f"s_sleep {sleep}")
    A(f"s_branch {name}")
    A(f"{name}_x:")
    A("s_waitcnt lgkmcnt(0)")


def gpoll(A, name, load, reg, bad, sleep, cnt=None):
    A(f"s_mov_b32 s79, {SPIN}")
    A(f"s_branch {name}")
    A(f"{name}_again:")
    A(f"s_sleep {sleep}")
    A(f"{name}:")
    A(load)
    A("s_sub_u32 s79, s79, 1"); A(f"s_cbranch_scc1 {name}_x")
    A("s_waitcnt vmcnt(0)")
    A(bad); A(f"s_cbranch_vccnz {name}_again")
    A(f"{name}_x:")
    A("s_waitcnt vmcnt(0)")
    if cnt: A(f"s_sub_u32 s{cnt}, {SPIN}, s79")


def epoch(A):
    A(f"s_add_u32 s0, s34, {WS_EP}"); A("s_addc_u32 s1, s35, 0"); A("s_load_dword s53, s[0:1], 0")


def arrive(A, lg, cnt, n, skip):
    A(f"v_mov_b32 v1, {CNT_L+4*cnt}"); A("v_mov_b32 v7, 1"); A("s_mov_b64 exec, 1"); A("ds_add_rtn_u32 v7, v1, v7"); A("s_mov_b64 exec, -1")
    lg.drain()
    A("v_readfirstlane_b32 s78, v7"); A(f"s_cmp_lg_u32 s78, {n-1}"); A(f"s_cbranch_scc1 {skip}")


def signal(A, lg, name, cnt, soff, vaddr16, vtmp):
    arrive(A, lg, cnt, 4, name)
    for i in range(4): A(f"v_mov_b32 v{vtmp+i}, s53")
    A("s_mov_b64 exec, 0xff")
    A(f"buffer_store_dwordx4 {vr(vtmp,4)}, v{vaddr16}, s[56:59], {soff} offen sc1")
    A("s_mov_b64 exec, -1")
    A(f"{name}:")


def wait_flags(A, lg, vm, name, cnt, n, soff, vline, vtmp, sleep, stat=None):
    arrive(A, lg, cnt, n, name + "_w")
    gpoll(A, name, f"buffer_load_dword v{vtmp}, v{vline}, s[56:59], {soff} offen sc1", vtmp, f"v_cmp_ne_u32 vcc, s53, v{vtmp}", sleep, stat)
    lds_add(A, cnt)
    A(f"{name}_w:")
    lds_wait(A, name + "_l", cnt, n + 1)
    vm.drain()


def kernel(opt):
    p = Prog(); A = p
    A("s_cmp_ge_u32 s2, 256"); A("s_cbranch_scc1 k_end")
    A("s_load_dwordx16 s[4:19], s[0:1], 0")
    A("s_load_dwordx16 s[20:35], s[0:1], 64")
    if opt.get("stamps"): A("s_memrealtime s[94:95]")
    A("s_and_b32 s36, s2, 7"); A("s_lshr_b32 s37, s2, 3")
    A("s_and_b32 s38, s36, 3"); A("s_lshl_b32 s38, s38, 2"); A("s_and_b32 s39, s37, 3"); A("s_add_u32 s38, s38, s39")
    A("s_lshr_b32 s39, s36, 2"); A("s_lshl_b32 s39, s39, 3"); A("s_lshr_b32 s41, s37, 2"); A("s_add_u32 s39, s39, s41")
    A("v_lshrrev_b32 v1, 6, v0"); A("v_and_b32 v0, 63, v0"); A("v_readfirstlane_b32 s40, v1")
    A("s_lshr_b32 s68, s37, 4"); A("s_lshl_b32 s69, s36, 1"); A("s_add_u32 s68, s68, s69")
    A("s_and_b32 s69, s37, 15")
    g2 = opt.get("g2map", 2)
    if g2 == 2:
        A("s_mov_b32 s100, s68"); A("s_add_u32 s101, s69, 2"); A("s_and_b32 s101, s101, 15"); A("s_mov_b32 s97, s101")
    else:
        A("s_lshr_b32 s100, s36, 1"); A("s_lshl_b32 s100, s100, 2"); A("s_lshr_b32 s97, s37, 3"); A("s_add_u32 s100, s100, s97")
        A("s_add_u32 s101, s37, 2"); A("s_and_b32 s101, s101, 7"); A("s_lshl_b32 s97, s97, 1"); A("s_add_u32 s97, s97, s101"); A("s_lshl_b32 s97, s97, 1")
        A("s_and_b32 s3, s36, 1"); A("s_lshl_b32 s3, s3, 3"); A("s_add_u32 s101, s101, s3")
    A("s_cmp_ge_u32 s40, 4"); A("s_cbranch_scc1 k_s")
    part_g(A, opt)
    A("k_s:")
    part_s(A, opt)
    A("k_end:"); A("s_endpgm")
    A("k_last:")
    return p


def kgen(A, name, opt, pc, mid, RAW, LDT, ID, M, W, KD, AF, DH, DL, HF):
    DT, AR, AI, t0, t1 = M, M + 2, M + 3, M + 4, M + 5
    W1, W256, W2, W4, W8, W32, W40, E4, CC, GA, GB, GC, GD, WQ, LA, LC = range(W, W + 32, 2)
    mf = lambda d, a, b, first: f"{MF32} {vr(d,16)}, {vr(a,4)}, {vr(b,4)}, " + ("0" if first else vr(d, 16))
    A(f"v_lshlrev_b32 v{LDT}, 16, v{LDT}"); A(f"s_mov_b32 s78, {hex(LOG2E)}")
    A(f"v_mul_f32 v{t0}, s78, v{LDT}"); A(f"v_fma_f32 v{t1}, v{LDT}, s78, -v{t0}"); A(f"v_fmac_f32 v{t1}, 0x32a57060, v{LDT}")
    A(f"v_exp_f32 v{t0}, v{t0}"); A(f"v_mul_f32 v{t1}, 0x3f317218, v{t1}"); A(f"v_fma_f32 v{t0}, v{t0}, v{t1}, v{t0}")
    A(f"v_cvt_pk_bf16_f32 v{DT}, v{t0}, v{t0}"); A(f"v_lshlrev_b32 v{DT}, 16, v{DT}")
    pk = (lambda t: unpk(t)) if pc else (lambda t: [t])
    cm = lambda r, z, w: [x.split("\n") for x in cmul(r, z, w, pc)]
    post = []
    for s in range(4):
        post += [f"v_cvt_pk_bf16_f32 v{DH[0]+4*s+i}, v{DH[0]+4*s+i}, v{DH[1]+4*s+i}" for i in range(4)]
        post += [f"v_cvt_pk_bf16_f32 v{DL[0]+4*s+i}, v{DL[0]+4*s+i}, v{DL[1]+4*s+i}" for i in range(4)]
        if s: post.insert(len(post) - 6, mf(KD, DH[0] + 4 * s - 4, DL[0] + 4 * s - 4, False))
    lastk = mf(KD, DH[0] + 12, DL[0] + 12, False)
    tm = lambda t: [mf(d, AF[t] + 4 * i, ID + 4 * t, t == 0) for i, d in enumerate((DH[0], DH[1], DL[0], DL[1]))]
    A("s_mov_b32 s46, 0")
    A(f"{name}_kgen:")
    pre = [f"v_lshlrev_b32 v{d}, 16, v{RAW+a}" for d, a in [(AR, 0), (AI, 1), (GA, 2), (GA + 1, 3), (GB, 4), (GB + 1, 5)]]
    pre += [f"v_mul_f32 v{AR}, v{AR}, v{DT}", f"v_mul_f32 v{AI}, v{AI}, v{DT}", f"v_mul_f32 v{AR}, {hex(LOG2E)}, v{AR}", f"v_mul_f32 v{AI}, {hex(INV2PI)}, v{AI}"]
    sh = []
    for a in range(6): sh += [f"v_lshrrev_b32 v{RAW+a}, 16, v{RAW+a}"]
    pre += [f"v_exp_f32 v{t0}, v{AR}", f"v_fract_f32 v{t1}, v{AI}", f"v_cos_f32 v{W1}, v{t1}", f"v_sin_f32 v{W1+1}, v{t1}"] + sh[:2]
    pre += [f"v_mul_f32 v{W1}, v{W1}, v{t0}", f"v_mul_f32 v{W1+1}, v{W1+1}, v{t0}",
            f"v_mul_f32 v{t0}, 0x43800000, v{AR}", f"v_mul_f32 v{t1}, 0x43800000, v{AI}",
            f"v_exp_f32 v{t0}, v{t0}", f"v_fract_f32 v{t1}, v{t1}", f"v_cos_f32 v{W256}, v{t1}", f"v_sin_f32 v{W256+1}, v{t1}"] + sh[2:4]
    pre += [f"v_mul_f32 v{W256}, v{W256}, v{t0}", f"v_mul_f32 v{W256+1}, v{W256+1}, v{t0}"] + sh[4:]
    for r in range(16): pass
    weave(A, pre[:26], tm(1))
    for x in pre[26:]: A(x)
    A("s_cmp_eq_u32 s46, 0"); A(f"s_cbranch_scc1 {name}_kfirst")
    for x in post: A(x)
    A("s_nop 1"); A(lastk)
    A(f"{name}_kfirst:")
    def two(c1, c2):
        for x in c1[0] + c2[0] + c1[1] + c2[1]: A(x)
    def one(c1, fill):
        for x in c1[0] + fill[:1] + c1[1] + fill[1:]: A(x)
    two(cm(W2, W1, W1), cm(CC, GA, GB))
    one(cm(W4, W2, W2), [f"v_mul_f32 v{CC}, v{CC}, v{DT}", f"v_mul_f32 v{CC+1}, v{CC+1}, v{DT}"])
    one(cm(W8, W4, W4), [f"v_cndmask_b32 v{E4}, 1.0, v{W4}, {HF}", f"v_cndmask_b32 v{E4+1}, 0, v{W4+1}, {HF}"])
    two(cm(W40, W8, W8), cm(GA, CC, E4))
    two(cm(W32, W40, W40), cm(GB, GA, W1))
    two(cm(W40, W32, W8), cm(GC, GB, W1))
    A(f"v_cndmask_b32 v{LA}, 1.0, v{W32}, {HF}"); A(f"v_cndmask_b32 v{LA+1}, 0, v{W32+1}, {HF}")
    hi = [None, None, None, (GD, GC, W1), (GB, GA, W256), (GC, GB, W2), (GD, GC, W2), (WQ, W256, E4),
          (GA, GB, W256), (GC, GA, W4), (GB, GA, W256), (GD, GB, W4), (GA, GB, WQ), (GC, GA, W256), (GB, GC, W256), (GD, GB, W256)]
    hreg = [GA, GB, GC, GD, GB, GC, GD, GD, GA, GC, GB, GD, GA, GC, GB, GD]
    def hpack(k):
        x, y = hreg[k - 1], hreg[k]; wd = AF[k >> 3] + ((k >> 1) & 3)
        return [f"v_cvt_pk_bf16_f32 v{wd}, v{x}, v{y}", f"v_cvt_pk_bf16_f32 v{wd+4}, -v{x+1}, -v{y+1}"]
    def lpack(k):
        wd = AF[k >> 3] + ((k >> 1) & 3)
        return [f"v_cvt_pk_bf16_f32 v{wd+8}, v{LA}, v{LC}", f"v_cvt_pk_bf16_f32 v{wd+12}, v{LA+1}, v{LC+1}"]
    for x in hpack(1): A(x)
    pendm = []
    for k in range(1, 16):
        cl_ = cm(LC, LA, W8) if k & 1 else cm(LA, LC, W8 if k & 3 else W40)
        if hi[k] is None: one(cl_, ["s_nop 0"] if not pc else [])
        else: two(cm(*hi[k]), cl_)
        if k & 1:
            P_ = (hpack(k) if k > 1 else ["s_nop 0"]) + lpack(k)
            if k >= 9: A(tm(0)[(k - 9) >> 1])
            for x in P_: A(x)
    A("s_add_u32 s46, s46, 1"); A("s_cmp_lt_u32 s46, 2")
    A(f"s_cbranch_scc1 {name}_kgen")
    x = tm(1); A(x[0]); A(x[1])
    mid()
    A(x[2]); A(x[3])
    for x in post: A(x)
    A("s_nop 1"); A(lastk)


def ident(A, vc, vh, ID):
    A(f"v_lshlrev_b32 v176, 2, v{vh}"); A(f"v_sub_u32 v176, v{vc}, v176")
    A("v_mov_b32 v177, 0x3f80"); A("v_mov_b32 v178, 0x3f800000")
    for t in range(2):
        for wd in range(4):
            c0 = 16 * t + 8 * (wd >> 1) + 2 * (wd & 1); d = ID + 4 * t + wd
            A(f"v_cmp_eq_u32 vcc, {c0}, v176"); A(f"v_cmp_eq_u32 s[98:99], {c0+1}, v176")
            A(f"v_cndmask_b32 v{d}, 0, v177, vcc"); A(f"v_cndmask_b32 v{d}, v{d}, v178, s[98:99]")


def part_g(A, opt):
    lg = Cnt(A, "lgkmcnt"); vm = Cnt(A, "vmcnt")
    plain = opt.get("plainsm")
    ACC = 16; F = [112, 132]; WP = 152; ID = 160; RAW = 168
    cvt = lambda d, s_, n=8: [f"v_cvt_pk_bf16_f32 v{d+i}, v{s_+2*i}, v{s_+2*i+1}" for i in range(n)]
    mf = lambda d, a, b, first: f"{MF32} {vr(d,16)}, {vr(a,4)}, {vr(b,4)}, " + ("0" if first else vr(d, 16))
    A("s_and_b32 s42, s40, 1"); A("s_lshr_b32 s43, s40, 1")
    A("s_lshl_b32 s47, s36, 5"); A("s_add_u32 s47, s47, s37"); A("s_lshl_b32 s47, s47, 2"); A("s_add_u32 s47, s47, s40")
    A("v_and_b32 v8, 31, v0"); A("s_lshl_b32 s60, s47, 8"); A("v_lshl_add_u32 v2, v8, 3, s60"); A("s_lshl_b32 s60, s47, 1"); A("v_mov_b32 v3, s60")
    A("s_lshl_b32 s44, s38, 1"); A("s_add_u32 s44, s44, s42")
    A("s_lshl_b32 s45, s44, 1"); A("s_add_u32 s45, s45, s43"); A("s_lshl_b32 s45, s45, 10")
    A("v_lshl_add_u32 v4, v0, 4, s45")
    A("s_waitcnt lgkmcnt(0)")
    if opt.get("stamps"): A("s_mov_b32 s80, s94")
    epoch(A)
    vm.issue("global_load_ushort v180, v3, s[26:27]", "par")
    for a in range(6): vm.issue(f"global_load_dword v{RAW+a}, v2, s[{14+2*a}:{15+2*a}]", "par")
    vm.issue("global_load_dwordx4 v[12:15], v4, s[8:9]", "wphi")
    if not not opt.get("codepf"):
        A("s_getpc_b64 s[62:63]")
        A("k_pc:")
        A("s_and_b32 s61, s37, 7"); A("s_lshl_b32 s61, s61, 5"); A("v_add_u32 v7, s61, v8"); A("v_lshlrev_b32 v7, 7, v7")
        A("v_min_u32 v7, k_last-k_pc-4, v7")
        vm.issue("global_load_dword v181, v7, s[62:63]", "code")
    srd(A, 56, 34, WS_SIZE); A(f"s_mov_b32 s72, {OOB}")
    A("s_lshl_b32 s73, s38, 2"); A("s_add_u32 s73, s73, s40"); A("s_lshl_b32 s73, s73, 4")
    A("v_lshrrev_b32 v9, 5, v0")
    ident(A, 8, 9, ID)
    A("s_lshl_b32 s46, s43, 13")
    A("v_bfe_u32 v10, v8, 1, 3"); A("v_xor_b32 v10, v10, v9"); A("v_lshl_add_u32 v11, v8, 7, s46")
    for t in range(4):
        A(f"v_xor_b32 v7, {2*t}, v10"); A(f"v_lshl_add_u32 v{2+t}, v7, 4, v11")
    A("v_bfe_u32 v10, v0, 2, 2")
    A("v_lshrrev_b32 v11, 1, v10"); A("v_xor_b32 v11, s42, v11")
    A("v_lshl_add_u32 v7, v9, 3, v10"); A("v_lshlrev_b32 v7, 7, v7"); A("v_lshl_add_u32 v7, v11, 6, v7")
    A("v_bfe_u32 v11, v0, 4, 1"); A("v_lshlrev_b32 v1, 5, v11"); A("v_and_b32 v11, 3, v0"); A("v_lshl_add_u32 v1, v11, 3, v1")
    A("v_add_u32 v7, v7, v1"); A(f"v_add_u32 v6, {WOFF}, v7")
    A("v_lshl_add_u32 v10, v9, 2, v10"); A("v_lshl_add_u32 v1, v10, 6, v1")
    A("s_lshl_b32 s60, s42, 11"); A(f"s_add_u32 s60, s60, {WPHI_L}"); A("v_add_u32 v1, s60, v1")
    HF = "s[70:71]"
    A(f"v_cmp_eq_u32 {HF}, 1, v9")
    KD = 224
    for r in range(16): A(f"v_mov_b32 v{KD+r}, 0")
    for r in list(range(32)) + list(range(64, 96)): A(f"v_mov_b32 v{ACC+r}, 0")
    A("s_lshl_b32 s60, s42, 1"); A("s_add_u32 s60, s60, s43"); A("s_lshl_b32 s60, s60, 10"); A(f"s_add_u32 s60, s60, {WPHI_L}")
    A("v_lshl_add_u32 v10, v0, 4, s60")
    A("s_lshl_b32 s60, s40, 12"); A(f"s_add_u32 s60, s60, {KD_L}"); A("v_lshl_add_u32 v11, v0, 4, s60")
    A("s_mul_i32 s47, s43, 0x80008000")
    vm.need("par")
    lg.drain()
    stamp(A, opt, 1)
    if opt.get("dly_g"): A(f"s_sleep {opt['dly_g']}")
    def mid():
        vm.need("wphi"); lg.issue("ds_write_b128 v10, v[12:15]"); A("s_add_u32 s53, s53, 1")
    kgen(A, "k_g", opt, opt.get("gplain", 0), mid, RAW, 180, ID, 182, 188, KD, [240, 64], [112, 128], [144, 48], HF)
    for r in range(32, 64): A(f"v_mov_b32 v{ACC+r}, 0")
    for i in range(4): lg.issue(f"ds_write_b128 v11, {vr(KD+4*i,4)} offset:{1024*i}")
    stamp(A, opt, 13)
    lg.drain()

    def reads(fs, t):
        b = F[fs]
        def W(g): return [(f"ds_read_b64_tr_b16 {vr(b+8+4*g+2*j,2)}, v6 offset:{t*6144+g*2048+j*512}", ("w", fs, g)) for j in range(2)]
        return [(f"ds_read_b128 {vr(b,4)}, v{2+t}", ("x", fs, 0))] + W(0) + [(f"ds_read_b128 {vr(b+4,4)}, v{2+t} offset:4096", ("x", fs, 1))] + W(1) + W(2)

    def mfs(fs):
        R = []
        for i in range(6):
            b = F[fs]; g = i // 2; blk = i % 2; a = ACC + 16 * i
            X = vr(b + 4 * blk, 4); Wf = vr(b + 8 + 4 * g, 4)
            R.append((f"{MF32} {vr(a,16)}, " + (f"{Wf}, {X}" if g < 2 else f"{X}, {Wf}") + f", {vr(a,16)}", {("x", fs, blk), ("w", fs, g)}))
        return R
    A("s_mov_b32 s50, 0"); A("s_mov_b32 s51, 0")
    A("s_barrier")
    stamp(A, opt, 2)
    if opt.get("stamps"): A("s_memtime s[98:99]"); A("s_waitcnt lgkmcnt(0)")
    for t in range(2):
        for j in range(2):
            lg.issue(f"ds_read_b64_tr_b16 {vr(WP+4*t+2*j,2)}, v1 offset:{(16*t+8*j)*64}", "wp")
    for r, tg in reads(0, 0): lg.issue(r, tg)
    lg.need("wp")
    for i in range(8): A(f"v_xor_b32 v{WP+i}, s47, v{WP+i}")
    q0 = list(lg.q)
    slots = [2, 2, 2, 2, 0, 0]
    A("k_gloop:")
    for t in range(4):
        fs = t & 1; R = reads(fs ^ 1, (t + 1) & 3); M = mfs(fs); ri = 0; last = (t == 3)
        if last:
            A("s_add_u32 s51, s51, 1"); A(f"s_mov_b32 s52, {STAGE}"); A("s_cmp_eq_u32 s51, 3")
            A(f"s_cselect_b32 s52, {(-2*STAGE)&0xffffffff}, s52"); A("s_cselect_b32 s51, 0, s51")
        for i, (m, tags) in enumerate(M):
            lg.need(tags); A(m)
            if last and i == 0:
                A("v_add_u32 v2, s52, v2"); A("v_add_u32 v6, s52, v6")
            for k in range(slots[i]): lg.issue(*R[ri]); ri += 1
            if last and i == 4:
                for a in (3, 4, 5): A(f"v_add_u32 v{a}, s52, v{a}")
                A("s_add_u32 s50, s50, 1"); A(f"s_cmp_lt_u32 s50, {NST}")
            if t == 2 and i == 4: A(f"s_cmp_eq_u32 s50, {NST-1}")
            if t == 2 and i == 5:
                lg.drain(); A("s_cbranch_scc1 k_nobar"); A("s_barrier"); A("k_nobar:")
    vm.q = []
    assert lg.q == q0
    A("s_cbranch_scc1 k_gloop")
    lg.drain()
    stamp(A, opt, 3)
    if opt.get("stamps"): A("s_memtime s[94:95]"); A("s_waitcnt lgkmcnt(0)"); A("s_sub_u32 s33, s94, s98")
    Q, K, V = ACC, ACC + 32, ACC + 64
    KB = 112; VB = 128; PK = [168, 184]; EN = [200, 216]; T = [232, 236]; ONES = 8
    if opt.get("dly_t"): A(f"s_sleep {opt['dly_t']}")
    if opt.get("gp", 3): A(f"s_setprio {opt.get('gp', 3)}")
    lds_add(A, 3)
    A(f"s_mov_b32 s54, {hex(LOG2E)}"); A(f"s_mov_b32 s55, {hex(LOG2E)}")
    for x in cvt(KB, K): A(x)
    x = cvt(KB + 8, K + 16)
    A(x[0]); A(mf(PK[0], WP, KB, True))
    for y in x[1:]: A(y)
    A(mf(PK[0], WP + 4, KB + 4, False))
    x = cvt(VB, V) + cvt(VB + 8, V + 16)
    weave(A, x, [mf(PK[1], WP, KB + 8, True), mf(PK[1], WP + 4, KB + 12, False)])
    for i in range(4): A(f"v_mov_b32 v{ONES+i}, 0x3f803f80")
    A(f"s_mul_i32 s60, s40, 4352"); A(f"s_add_u32 s60, s60, {X_L}")
    A("s_xor_b32 s61, s40, 2"); A(f"s_mul_i32 s61, s61, 4352"); A(f"s_add_u32 s61, s61, {X_L}")
    PH = [48, 64]; KV = [80, 96]; TA = [112, 48]; Z = [168, 200]
    st0, fin0 = softmax_parts(PK[0], EN[0], T[0], PH[0], PH[0] + 8, 54, plain)
    st1, fin1 = softmax_parts(PK[1], EN[1], T[1], PH[1], PH[1] + 8, 54, plain)
    zipper(A, st0, st1)
    TD = [[PK[0], EN[0]], [PK[1], EN[1]]]
    half = len(fin0) // 2
    trn = lambda b, s: [mf(TD[b][s], PH[b] + 8 * s + 4 * t, ID + 4 * t, t == 0) for t in range(2)]
    kvm = lambda b, s: [mf(KV[s], TA[b] + 8 * s + 4 * t, VB + 8 * b + 4 * t, b == 0 and t == 0) for t in range(2)]
    zm = lambda b, s: [mf(Z[s], ONES, TA[b] + 8 * s + 4 * t, b == 0 and t == 0) for t in range(2)]
    for y in fin0[:half]: A(y)
    weave(A, fin0[half:], trn(0, 1), 2)
    weave(A, fin1[:half], trn(0, 0), 2)
    weave(A, fin1[half:], trn(1, 1), 2)
    weave(A, cvt(TA[0] + 8, TD[0][1]) + cvt(TA[0], TD[0][0]), trn(1, 0), 2)
    weave(A, cvt(TA[1] + 8, TD[1][1]), kvm(0, 1))
    adr = ["v_lshl_add_u32 v12, v0, 4, s60", "v_lshl_add_u32 v13, v0, 4, s61", "v_lshl_add_u32 v14, v0, 2, s60", "v_lshl_add_u32 v15, v0, 2, s61",
           "v_lshlrev_b32 v5, 4, v0", "v_lshlrev_b32 v6, 2, v0", "v_cmp_gt_u32 vcc, 32, v0", f"v_mov_b32 v4, {OOB}", "s_nop 0", "v_cndmask_b32 v4, v4, v6, vcc"]
    weave(A, cvt(TA[1], TD[1][0]) + adr, kvm(1, 1) + zm(0, 1))
    for y in zm(1, 1) + kvm(0, 0): A(y)
    A("s_lshl_b32 s62, s42, 2"); A(f"s_add_u32 s62, s62, {CNT_L}")
    A("s_add_u32 s67, s73, s39")
    A("s_lshl_b32 s74, s67, 11"); A(f"s_add_u32 s74, s74, {WS_KVP}"); A("s_lshl_b32 s75, s67, 7"); A(f"s_add_u32 s75, s75, {WS_ZP}")
    rest = kvm(1, 0) + zm(0, 0) + zm(1, 0)
    for i in range(4):
        lg.issue(f"ds_write_b128 v12, {vr(KV[1]+4*i,4)} offset:{1024*i}")
        A(rest[i])
    lg.issue(f"ds_write_b32 v14, v{Z[1]} offset:4096")
    for y in rest[4:]: A(y)
    lg.drain()
    lds_add(A, "s62")
    lds_wait(A, "k_spinA", "s62", 2)
    for i in range(4): lg.issue(f"ds_read_b128 {vr(KV[1]+4*i,4)}, v13 offset:{1024*i}", i)
    lg.issue(f"ds_read_b32 v{Z[1]}, v15 offset:4096", "z")
    PB = 128
    for i in range(4):
        lg.need(i)
        for j in range(4): A(f"v_add_f32 v{KV[0]+4*i+j}, v{KV[0]+4*i+j}, v{KV[1]+4*i+j}")
        for j in range(2): A(f"v_cvt_pk_bf16_f32 v{PB+2*i+j}, v{KV[0]+4*i+2*j}, v{KV[0]+4*i+2*j+1}")
        if i & 1: vm.issue(f"buffer_store_dwordx4 {vr(PB+4*(i>>1),4)}, v5, s[56:59], s74 offen offset:{1024*(i>>1)} sc1")
    lg.need("z")
    A(f"v_add_f32 v2, v{Z[0]}, v{Z[1]}")
    vm.issue("buffer_store_dword v2, v4, s[56:59], s75 offen sc1")
    stamp(A, opt, 4)
    rel = opt.get("rel", 1)
    if rel == 0: lds_add(A, 2)
    QB = 112; PQ = [168, 184]; PHQ = [16, 32]
    for y in cvt(QB, Q): A(y)
    weave(A, cvt(QB + 8, Q + 16), [mf(PQ[0], WP, QB, True), mf(PQ[0], WP + 4, QB + 4, False)], 1)
    A(mf(PQ[1], WP, QB + 8, True)); A(mf(PQ[1], WP + 4, QB + 12, False))
    IDC = 64
    for i in range(8): A(f"v_mov_b32 v{IDC+i}, v{ID+i}")
    A("s_lshl_b32 s75, s73, 7"); A(f"s_add_u32 s75, s75, {WS_ZP}")
    A("s_lshl_b32 s76, s38, 11"); A(f"s_add_u32 s76, s76, {WS_FK}"); A("s_lshl_b32 s77, s39, 7"); A("s_add_u32 s77, s77, s76")
    st0, fin0 = softmax_parts(PQ[0], EN[0], T[0], PHQ[0], PHQ[0] + 8, 54, plain or opt.get("plainq"))
    st1, fin1 = softmax_parts(PQ[1], EN[1], T[1], PHQ[1], PHQ[1] + 8, 54, plain or opt.get("plainq"))
    cut = opt.get("sigat", 20)
    zipper(A, st0[:cut], st1[:cut])
    vm.drain(); signal(A, lg, "k_ksig", 9, "s77", 5, 72)
    pass
    zipper(A, st0[cut:], st1[cut:]); zipper(A, fin0, fin1)
    A("v_and_b32 v2, 15, v0"); A("v_lshlrev_b32 v2, 7, v2")
    if rel == 1: lds_add(A, 2)
    A("v_and_b32 v8, 31, v0"); A("v_lshrrev_b32 v9, 4, v8"); A("v_lshlrev_b32 v9, 5, v9")
    A("v_bfe_u32 v10, v8, 2, 1"); A("v_lshl_add_u32 v9, v10, 4, v9"); A("v_bfe_u32 v10, v8, 3, 1"); A("v_lshl_add_u32 v9, v10, 3, v9")
    A("v_and_b32 v10, 3, v8"); A("v_lshl_add_u32 v9, v10, 1, v9")
    A("s_lshl_b32 s70, s42, 7"); A(f"s_add_u32 s70, s70, {X_L+8192}"); A("s_lshl_b32 s71, s43, 6"); A("s_add_u32 s71, s71, s70"); A("v_add_u32 v9, s71, v9")
    A("v_lshrrev_b32 v11, 5, v0"); A("v_lshl_add_u32 v10, v11, 4, s71"); A("v_xor_b32 v11, 64, v10")
    A("s_lshl_b32 s71, s40, 11"); A(f"s_add_u32 s71, s71, {X_L}"); A("v_add_u32 v12, s71, v5")
    A("s_xor_b32 s71, s40, 2"); A("s_lshl_b32 s71, s71, 11"); A(f"s_add_u32 s71, s71, {X_L}"); A("v_add_u32 v13, s71, v5")
    A("s_lshl_b32 s74, s73, 11"); A(f"s_add_u32 s74, s74, {WS_KVP}")
    stamp(A, opt, 5)
    LD = 112; ZL = 48; RED = 80
    wait_flags(A, lg, vm, "k_poll", 10, 4, "s76", 2, 4, opt.get("sleep", 4), 32 if opt.get("stamps") else None)
    stamp(A, opt, 6)
    for i in range(8): vm.issue(f"buffer_load_dword v{ZL+i}, v6, s[56:59], s75 offen offset:{256*i} sc1", ("z", i))
    for r in range(16):
        if not r & 1:
            A(f"s_add_u32 s60, s39, {r>>1}"); A("s_and_b32 s60, s60, 7"); A("s_lshl_b32 s60, s60, 12"); A("s_add_u32 s60, s60, s74")
        for i in range(2):
            vm.issue(f"buffer_load_dwordx4 {vr(LD+8*r+4*i,4)}, v5, s[56:59], s60 offen offset:{(r&1)*2048+1024*i} sc1", (r, i))
    vm.need(("z", 7))
    for i in range(0, 8, 2): A(f"v_add_f32 v{ZL+i}, v{ZL+i}, v{ZL+i+1}")
    A(f"v_add_f32 v{ZL}, v{ZL}, v{ZL+2}"); A(f"v_add_f32 v{ZL+4}, v{ZL+4}, v{ZL+6}"); A(f"v_add_f32 v{ZL}, v{ZL}, v{ZL+4}")
    A(f"v_mov_b32 v{ZL+1}, v{ZL}"); A(f"v_permlane32_swap_b32 v{ZL}, v{ZL+1}"); A(f"v_add_f32 v{ZL}, v{ZL}, v{ZL+1}")
    A(f"v_cvt_pk_bf16_f32 v{ZL}, v{ZL}, v{ZL}")
    lg.issue(f"ds_write_b16 v9, v{ZL}")
    for r in range(16):
        for i in range(2):
            vm.need((r, i))
            x = LD + 8 * r + 4 * i
            A(mf(RED, IDC + 4 * i, x, r == 0 and i == 0))

    lds_add(A, 7)
    stamp(A, opt, 7)
    KF = 96; ZF = 112; NUM = [144, 160]; DEN = [176, 192]; OB = 208
    A("s_lshl_b32 s70, s39, 1"); A("s_add_u32 s70, s70, s43"); A("s_lshl_b32 s70, s70, 17"); A("s_lshl_b32 s71, s44, 11")
    A("s_add_u32 s70, s70, s71"); A(f"s_add_u32 s70, s70, {WS_O}"); A("s_add_u32 s71, s70, 65536")
    for y in cvt(KF, RED): A(y)
    for i in range(2): lg.issue(f"ds_write_b128 v12, {vr(KF+4*i,4)} offset:{1024*i}")
    for t in range(2):
        for b in range(2): A(mf(NUM[b], KF + 4 * t, PHQ[b] + 4 * t, t == 0))
    lg.drain()
    lds_add(A, "s62")
    lds_wait(A, "k_spinC", "s62", 4)
    for s in range(2):
        for t in range(2): lg.issue(f"ds_read_b128 {vr(ZF+8*s+4*t,4)}, v{10+s} offset:{32*t}", ("z", s, t))
    for t in range(2): lg.issue(f"ds_read_b128 {vr(KF+8+4*t,4)}, v13 offset:{1024*t}", ("k", t))
    for s in range(2):
        for t in range(2):
            lg.need(("z", s, t))
            for b in range(2): A(mf(DEN[b], ZF + 8 * s + 4 * t, PHQ[b] + 8 * s + 4 * t, s == 0 and t == 0))
    for b in range(2):
        for t in range(2):
            lg.need(("k", t))
            A(mf(NUM[b], KF + 8 + 4 * t, PHQ[b] + 8 + 4 * t, False))
    for b in range(2):
        A(f"v_add_f32 v{DEN[b]}, 0x358637bd, v{DEN[b]}"); A(f"v_rcp_f32 v{DEN[b]}, v{DEN[b]}")
    A("s_lshl_b32 s75, s39, 4"); A("s_add_u32 s75, s75, s38"); A("s_lshl_b32 s75, s75, 7"); A(f"s_add_u32 s75, s75, {WS_FO}")
    A("s_lshl_b32 s76, s100, 11"); A(f"s_add_u32 s76, s76, {WS_FO}")
    A("v_lshrrev_b32 v8, 5, v0"); A("v_bfe_u32 v9, v0, 2, 2"); A("v_lshl_add_u32 v10, v8, 2, v9"); A("v_lshlrev_b32 v10, 7, v10")
    for b in range(2):
        for i in range(16): A(f"v_mul_f32 v{NUM[b]+i}, v{NUM[b]+i}, v{DEN[b]}")
        for y in cvt(OB + 8 * b, NUM[b]): A(y)
        for t in range(2): vm.issue(f"buffer_store_dwordx4 {vr(OB+8*b+4*t,4)}, v5, s[56:59], s{70+b} offen offset:{1024*t}" + ("" if opt.get("oplain") else " sc1"))
    stamp(A, opt, 8)
    A("v_and_b32 v11, 1, v0"); A("v_lshl_add_u32 v10, v11, 5, v10"); A("v_bfe_u32 v11, v0, 4, 1"); A("v_lshl_add_u32 v10, v11, 4, v10")
    A("v_bfe_u32 v11, v0, 1, 1"); A("v_lshl_add_u32 v10, v11, 3, v10")
    A("v_lshrrev_b32 v9, 1, v9"); A("v_lshl_add_u32 v10, v9, 6, v10"); A("v_xor_b32 v11, 64, v10")
    for k in range(1, 3): A(f"v_add_u32 v{10+2*k}, {65536*k}, v10"); A(f"v_add_u32 v{11+2*k}, {65536*k}, v11")
    A("v_and_b32 v4, 15, v0"); A("v_lshlrev_b32 v4, 7, v4")
    A("s_lshl_b32 s77, s100, 2"); A("s_add_u32 s77, s77, s40"); A("s_lshl_b32 s77, s77, 16"); A(f"s_add_u32 s77, s77, {WS_O}")
    vm.drain()
    signal(A, lg, "k_osig", 11, "s75", 5, 72)
    stamp(A, opt, 9)
    if opt.get("odelay"): A(f"s_sleep {opt['odelay']}")
    lds_wait(A, "k_wo1", 4, 4)
    wait_flags(A, lg, vm, "k_opoll", 12, 4, "s76", 4, 9, opt.get("sleep2", 4))
    A("s_or_b32 s60, s2, s40"); A("s_cmp_eq_u32 s60, 0"); A(f"s_cselect_b32 s60, {WS_EP}, s72")
    A("v_mov_b32 v2, 0"); A("v_mov_b32 v3, s53"); A("s_mov_b64 exec, 1")
    vm.issue("buffer_store_dword v3, v2, s[56:59], s60 offen", "ep"); A("s_mov_b64 exec, -1")
    stamp(A, opt, 10)
    if opt.get("stamps"): A("s_memtime s[98:99]"); A("s_waitcnt lgkmcnt(0)")
    ACC2 = [16, 32]; WF = [48, 56, 64]; OF = 72; D = opt.get("look", 16); RING = D + 2

    def oload(p_):
        if p_ & 3 == 0:
            A(f"s_add_u32 s60, s97, {p_>>2}"); A("s_and_b32 s60, s60, 15"); A("s_lshl_b32 s60, s60, 12"); A("s_add_u32 s60, s60, s77")
        vm.issue(f"buffer_load_dwordx4 {vr(OF+4*(p_%RING),4)}, v5, s[56:59], s60 offen offset:{1024*(p_&3)} sc1", ("o", p_))

    def wreads(p_):
        base = UNIT[p_ >> 2] + 2048 * (p_ & 3); fs = p_ % 3
        for nb in range(2):
            for j in range(2):
                a = base + 1024 * j
                lg.issue(f"ds_read_b64_tr_b16 {vr(WF[fs]+4*nb+2*j,2)}, v{10+2*(a>>16)+nb} offset:{a&65535}", ("w", fs, nb))
    for p_ in range(D): oload(p_)
    wreads(0); wreads(1)
    for p_ in range(64):
        fs = p_ % 3
        if opt.get("g2st") and p_ in (0, 1, 16, 32): stamp(A, opt, {0: 1, 1: 2, 16: 3, 32: 4}[p_])
        if p_ + 2 == 44:
            if opt.get("g2st"): stamp(A, opt, 5)
            lg.drain(); lds_wait(A, "k_wo2", 5, 4)
            if opt.get("g2st"): stamp(A, opt, 6)
        if p_ + D == 64 and opt.get('ygate', 1): lg.drain(); lds_add(A, 8)
        if p_ < 62: wreads(p_ + 2)
        vm.need(("o", p_))
        for nb in range(2):
            lg.need(("w", fs, nb))
            A(mf(ACC2[nb], WF[fs] + 4 * nb, OF + 4 * (p_ % RING), p_ == 0))
            if nb == 0 and p_ + D < 64: oload(p_ + D)
    stamp(A, opt, 11)
    if opt.get("g2st"): A("s_memtime s[94:95]"); A("s_waitcnt lgkmcnt(0)"); A("s_sub_u32 s33, s94, s98")
    srd(A, 4, 30, 0x800000)
    A("s_lshl_b32 s64, s40, 12"); A(f"s_add_u32 s64, s64, {X_L}")
    A("v_and_b32 v13, 31, v0"); A("v_lshl_add_u32 v14, v13, 7, s64"); A("v_and_b32 v13, 7, v13"); A("v_lshlrev_b32 v15, 1, v8"); A("v_xor_b32 v13, v13, v15")
    A("v_lshrrev_b32 v1, 3, v0"); A("v_and_b32 v2, 7, v0")
    for nb in range(2):
        for y in cvt(64 + 8 * nb, ACC2[nb]): A(y)
        for i in range(2):
            A(f"v_xor_b32 v15, {4*nb+i}, v13"); A("v_lshl_add_u32 v15, v15, 4, v14")
            lg.issue(f"ds_write_b128 v15, {vr(64+8*nb+4*i,4)}")
    A("v_xor_b32 v13, v1, v2"); A("v_lshlrev_b32 v13, 4, v13"); A("v_lshl_add_u32 v13, v1, 7, v13"); A("v_add_u32 v13, s64, v13")
    A("s_lshl_b32 s64, s100, 19"); A("s_lshl_b32 s65, s40, 17"); A("s_add_u32 s64, s64, s65"); A("s_lshl_b32 s65, s101, 7"); A("s_add_u32 s64, s64, s65")
    A("v_lshlrev_b32 v14, 12, v1"); A("v_lshl_add_u32 v14, v2, 4, v14")
    lg.drain()
    for k in range(4): lg.issue(f"ds_read_b128 {vr(80+4*k,4)}, v13 offset:{1024*k}", k)
    om = {0: "", 1: " sc1", 2: " nt", 3: " sc0 sc1"}[opt.get("ost", 0)]
    for k in range(4):
        lg.need(k)
        A(f"buffer_store_dwordx4 {vr(80+4*k,4)}, v14, s[4:7], s64 offen" + om)
        if k < 3: A("s_add_u32 s64, s64, 32768")
    if opt.get("stamps"):
        A("s_waitcnt vmcnt(0)"); stamp(A, opt, 12); write_stamps(A)
    A("s_endpgm")


def first_use(order, k):
    n = sum(order[k])
    return all(sum(o) != n for o in order[:k])


def part_s(A, opt):
    lg = Cnt(A, "lgkmcnt"); vm = Cnt(A, "vmcnt")
    A("s_sub_u32 s41, s40, 4")
    A("v_lshrrev_b32 v1, 3, v0"); A("s_lshl_b32 s42, s41, 5"); A("v_add_u32 v5, s42, v1"); A("v_lshlrev_b32 v5, 11, v5")
    A("v_and_b32 v2, 7, v0"); A("v_lshrrev_b32 v3, 4, v0")
    for i in range(4):
        A(f"v_xor_b32 v4, {4*(i&1)}, v3"); A("v_xor_b32 v4, v4, v2"); A("v_lshl_add_u32 v4, v4, 4, v5")
        A(f"v_add_u32 v{8+i}, {16384*i-1024*i}, v4")
    A("s_lshl_b32 s42, s41, 4"); A("v_add_u32 v19, s42, v1"); A("v_mul_u32_u24 v5, 6144, v19"); A("s_lshl_b32 s42, s38, 7"); A("v_add_u32 v5, s42, v5")
    A("v_bfe_u32 v3, v0, 4, 1"); A("v_lshlrev_b32 v4, 2, v3"); A("v_xor_b32 v6, v4, v2"); A("v_lshl_add_u32 v4, v6, 4, v5")
    for half in range(2):
        for g in range(3):
            idx = 2 * g + half
            A(f"v_add_u32 v{12+idx}, {half*8*6144+g*2048-1024*(idx&3)}, v4")
    A("s_lshl_b32 s43, s41, 12"); A("s_mul_i32 s44, s41, 6144"); A(f"s_add_u32 s44, s44, {WOFF}")
    A("s_lshr_b32 s45, s37, 2"); A("s_add_u32 s45, s45, s37")
    A("s_lshl_b32 s46, s39, 18")
    A("s_waitcnt lgkmcnt(0)")
    if opt.get("stamps"): A("s_mov_b32 s80, s94")
    srd(A, 48, 4, 0x40000, add="s46"); srd(A, 64, 6, 0x600000)

    def issue(i):
        buf = (i % 3) * STAGE
        P = opt.get("P", 4)
        if opt.get("f0") and i < 4:
            if i == 0: A("s_mov_b32 s60, 0")
            else:
                A("s_and_b32 s60, s45, 3"); A("s_min_u32 s60, s60, 2"); A(f"s_add_u32 s60, s60, {i-1}"); A("s_cmp_ge_u32 s60, 3"); A("s_cselect_b32 s61, 3, 0"); A("s_sub_u32 s60, s60, s61"); A("s_add_u32 s60, s60, 1")
        else:
            A(f"s_add_u32 s60, s45, {i&(P-1)}"); A(f"s_and_b32 s60, s60, {P-1}")
        if i & (16 - P): A(f"s_or_b32 s60, s60, {i&(16-P)}")
        A("s_lshl_b32 s61, s60, 7"); A(f"s_mul_i32 s62, s60, {64*6144}")
        A(f"s_add_u32 m0, s43, {buf}")
        for k in range(4): vm.issue(f"buffer_load_dwordx4 v{8+k}, s[48:51], s61 offen offset:{1024*k} lds", ("st", i))
        A(f"s_add_u32 m0, s44, {buf}")
        for k in range(4): vm.issue(f"buffer_load_dwordx4 v{12+k}, s[64:67], s62 offen offset:{1024*k} lds", ("st", i))
        A(f"s_add_u32 m0, s44, {buf+4096}")
        for k in range(2): vm.issue(f"buffer_load_dwordx4 v{16+k}, s[64:67], s62 offen offset:{1024*k} lds", ("st", i))

    A("s_lshl_b32 s47, s36, 5"); A("s_add_u32 s47, s47, s37"); A("s_lshl_b32 s47, s47, 2"); A("s_add_u32 s47, s47, s41")
    A("v_and_b32 v18, 31, v0"); A("s_lshl_b32 s60, s47, 8"); A("v_lshl_add_u32 v4, v18, 3, s60"); A("s_lshl_b32 s60, s47, 1"); A("v_mov_b32 v5, s60")
    issue(0)
    vm.issue("global_load_ushort v234, v5, s[26:27]", "par")
    for a in range(6): vm.issue(f"global_load_dword v{228+a}, v4, s[{14+2*a}:{15+2*a}] offset:4", "par")
    vm.issue("global_load_ushort v22, v5, s[28:29]", "par")
    A("s_lshl_b32 s20, s69, 18"); A("s_lshl_b32 s71, s68, 7"); A("s_add_u32 s20, s20, s71"); A("s_lshl_b32 s71, s41, 16"); A("s_add_u32 s20, s20, s71")
    A("v_lshlrev_b32 v24, 11, v1"); A("v_lshl_add_u32 v24, v2, 4, v24")
    A("s_lshl_b32 s21, s41, 12"); A(f"s_add_u32 s21, s21, {UT_L}")
    srd(A, 24, 12, 0x400000); A("s_mov_b32 m0, s21")
    for k in range(4):
        vm.issue(f"buffer_load_dwordx4 v24, s[24:27], s20 offen offset:{1024*k} lds", "uin")
        if k < 3: A(f"s_add_u32 s20, s20, {16384-1024}")
    A("s_setprio 3")
    A("v_lshrrev_b32 v3, 5, v0")
    ident(A, 18, 3, 236)
    UIN = 128; KD = 108; HF = "s[72:73]"
    epoch(A)
    srd(A, 56, 34, WS_SIZE)
    A("v_lshrrev_b32 v39, 4, v0"); A("v_bfe_u32 v4, v0, 2, 2"); A("v_lshl_add_u32 v4, v39, 3, v4"); A("v_lshlrev_b32 v4, 7, v4")
    A("v_and_b32 v40, 3, v0"); A("v_lshl_add_u32 v4, v40, 3, v4"); A("v_add_u32 v25, s21, v4")
    A("v_and_b32 v4, 15, v0"); A("v_lshlrev_b32 v26, 12, v4"); A("v_lshl_add_u32 v26, v39, 4, v26")
    A("s_lshl_b32 s70, s68, 18"); A("s_lshl_b32 s71, s69, 8"); A("s_add_u32 s70, s70, s71"); A("s_lshl_b32 s71, s41, 6"); A("s_add_u32 s70, s70, s71")
    if WS_UT: A(f"s_add_u32 s70, s70, {WS_UT}")
    A("s_lshl_b32 s60, s2, 2"); A("s_add_u32 s60, s60, s41"); A("s_lshl_b32 s61, s60, 7"); A("s_lshl_b32 s60, s60, 11"); A("v_lshl_add_u32 v35, v4, 7, s60")
    A(f"s_add_u32 s61, s61, {WS_FK}"); A("v_mov_b32 v34, s61")
    A("v_lshlrev_b32 v19, 11, v19"); A("v_lshl_add_u32 v19, v6, 4, v19"); A("s_lshl_b32 s42, s101, 7"); A("v_add_u32 v19, s42, v19"); A(f"v_add_u32 v20, {16384-1024}, v19")
    A(f"s_mul_i32 s74, s41, {TBL}"); A(f"s_add_u32 s74, s74, {TB_L}")
    A("s_mul_i32 s63, s41, 4608"); A(f"s_add_u32 s63, s63, {U_L}")
    A("v_lshrrev_b32 v3, 5, v0"); A(f"v_cmp_eq_u32 {HF}, 1, v3")
    A("v_cmp_eq_u32 vcc, 0, v0"); A("v_lshlrev_b32 v5, 4, v0")
    A("s_lshl_b32 s60, s41, 12"); A(f"s_add_u32 s60, s60, {KD_L}"); A("v_add_u32 v21, s60, v5")
    A("v_min_u32 v36, 29, v0"); A("v_lshl_add_u32 v36, v36, 4, s63"); A("v_add_u32 v37, s63, v5"); A("v_lshlrev_b32 v38, 7, v4")
    A("s_lshl_b32 s22, s68, 11"); A(f"s_add_u32 s22, s22, {WS_FU}"); A("s_lshl_b32 s23, s69, 7"); A("s_add_u32 s23, s23, s22")
    for i in range(4): A(f"v_mov_b32 v{28+i}, 0")
    srd(A, 8, 10, 0x200000); A("s_lshl_b32 s3, s41, 11")

    def wo_groups(gs, regs=None):
        for n, g in enumerate(gs):
            if g >= opt.get("thr_from", 4) and len(vm.q) > opt.get("thr", 4):
                A(f"s_waitcnt vmcnt({opt.get('thr', 4)})"); vm.q = vm.q[len(vm.q) - opt.get("thr", 4):] if opt.get("thr", 4) else []
            A(f"s_add_u32 s60, s97, {g}"); A("s_and_b32 s60, s60, 15"); A("s_lshl_b32 s60, s60, 17")
            if regs is None:
                A(f"s_add_u32 m0, s3, {UNIT[g]}")
                for j in range(2): vm.issue(f"buffer_load_dwordx4 v{19+j}, s[8:11], s60 offen offset:{1024*j} lds", ("wo", g))
            else:
                for j in range(2): vm.issue(f"buffer_load_dwordx4 {vr(regs+8*n+4*j,4)}, v{19+j}, s[8:11], s60 offen offset:{1024*j}", ("wo", g))

    A("s_waitcnt lgkmcnt(0)"); A("s_add_u32 s53, s53, 1")
    bt = opt.get("bt", 1)
    if bt:
        A("s_cmp_ge_u32 s41, 2"); A("s_cselect_b32 s12, s6, s4"); A("s_cselect_b32 s13, s7, s5"); A("s_mov_b32 s14, 0x400000"); A("s_cselect_b32 s14, 0x600000, s14"); A("s_mov_b32 s15, 0x20000")
        A("s_movk_i32 s16, 512"); A(f"s_cselect_b32 s16, {256*6144}, s16"); A("s_mov_b32 s17, s16")
        A("s_and_b32 s60, s41, 1"); A("s_cbranch_scc0 k_btx") if False else None
        A("s_lshl_b32 s61, s60, 4"); A("v_add_u32 v32, s61, v0"); A("v_lshrrev_b32 v33, 2, v32"); A("s_lshl_b32 s61, s2, 3"); A("v_add_u32 v33, s61, v33")
        A("v_lshlrev_b32 v33, 11, v33"); A("v_and_b32 v32, 3, v32"); A("v_lshl_add_u32 v33, v32, 7, v33")
        A("s_mul_i32 s61, s60, 24"); A("v_add_u32 v32, s61, v0"); A("v_lshlrev_b32 v32, 7, v32"); A("s_mul_i32 s61, s2, 6144"); A("v_add_u32 v32, s61, v32")
        A("s_cmp_ge_u32 s41, 2"); A("s_cselect_b64 s[18:19], -1, 0"); A("s_cselect_b32 s60, 24, 16")
        A("v_cndmask_b32 v33, v33, v32, s[18:19]"); A("v_cmp_gt_u32 s[18:19], s60, v0"); A(f"v_mov_b32 v32, {OOB}"); A("v_cndmask_b32 v33, v32, v33, s[18:19]")
    def touch():
        if bt: vm.issue("buffer_load_dword v23, v33, s[12:15], s17 offen", "bt"); A("s_add_u32 s17, s17, s16")
    A("s_setprio 0")
    issue(1)
    vm.need(("st", 0)); A("s_barrier")
    issue(2)
    touch()
    if not opt.get("nowot"): vm.issue("buffer_load_dword v23, v35, s[8:11], 0 offen", "wot")
    if not opt.get("noft"): vm.issue("buffer_load_dword v23, v34, s[56:59], 0 offen", "wot")
    stamp(A, opt, 1, True)
    for i in range(4): lg.issue(f"ds_read_b128 {vr(KD+4*i,4)}, v21 offset:{1024*i}")
    for i in range(13):
        vm.need(("st", i + 1)); A("s_barrier")
        if opt.get("steps"): A("s_memrealtime s[94:95]")
        issue(i + 3)
        if opt.get("steps"): A("s_waitcnt lgkmcnt(0)"); A(f"s_mov_b32 s{82+i}, s94")
        if i in (1, 5): touch()
        if i == 0: A("v_lshlrev_b32 v22, 16, v22"); A("v_cndmask_b32 v22, 0, v22, vcc")
        if i == 1:
            vm.need("uin")
            for cq in range(4):
                for j in range(2): lg.issue(f"ds_read_b64_tr_b16 {vr(UIN+4*cq+2*j,2)}, v25 offset:{512*j+32*cq}", cq)
        if i == 2: lg.drain()
    if opt.get("sp", 2): A(f"s_setprio {opt.get('sp', 2)}")
    A("s_lshl_b32 s75, s47, 12"); A(f"s_add_u32 s76, s75, {WS_UT}")
    WR = 188; WE = 144
    vm.need(("st", 14)); A("s_barrier")
    for cq in range(4):
        vm.issue(f"buffer_store_dwordx4 {vr(UIN+4*cq,4)}, v26, s[56:59], s70 offen sc1", "uout")
        if cq < 3: A("s_add_u32 s70, s70, 65536")
    wo_groups(range(2))
    A(f"v_mov_b32 v1, {CNT_L}")
    for i in range(5): lg.issue(f"ds_write_b128 v1, v[28:31] offset:{16*i}")
    lg.drain()
    vm.need(("st", 15)); A("s_barrier")
    stamp(A, opt, 3, True)
    wo_groups(range(2, 4))
    vm.need("uout")
    stamp(A, opt, 12, True)
    signal(A, lg, "k_usig", 13, "s23", 5, 40)
    wo_groups(range(4, 6)); wo_groups(range(6, 11), WE)
    if opt.get("wlate", 9) == 9: wo_groups(range(11, 16), WR)
    lg.issue("ds_write_b128 v36, v[28:31]")
    lg.drain()
    lds_wait(A, "k_ldone", 3, 4)
    A("v_add_u32 v39, s3, v5")
    for n, g in enumerate(range(6, 11)):
        vm.need(("wo", g))
        for j in range(2): lg.issue(f"ds_write_b128 v39, {vr(WE+8*n+4*j,4)} offset:{UNIT[g]+1024*j}")
    vm.drain()
    wait_flags(A, lg, vm, "k_utpoll", 14, 4, "s22", 38, 44, 8)
    stamp(A, opt, 10, True)
    for i in range(4): vm.issue(f"buffer_load_dwordx4 {vr(UIN+4*i,4)}, v5, s[56:59], s76 offen offset:{1024*i} sc1", "u")
    lg.drain()
    lds_add(A, 4)
    vm.need("u")
    for i in range(4): lg.issue(f"ds_write_b128 v37, {vr(UIN+4*i,4)} offset:{480+1024*i}")
    lg.drain()
    stamp(A, opt, 4, True)
    lds_wait(A, "k_hold", 2, 4, sleep=1)
    stamp(A, opt, 11, True)
    if opt.get("sp", 2): A("s_setprio 0")
    kgen(A, "k_s", opt, 0, lambda: None, 228, 234, 236, 244, 44, KD, [76, 92], [124, 140], [156, 172], HF)
    stamp(A, opt, 2, True)
    d = lambda a, b: KD + 4 * a + b
    A("v_add_u32 v4, 31, v0"); A("v_subrev_u32 v2, 32, v0"); A(f"v_cndmask_b32 v4, v4, v2, {HF}"); A("v_lshlrev_b32 v4, 2, v4")
    lg.issue(f"ds_bpermute_b32 v44, v4, v{d(0,3)}", "prev")
    A(f"v_add_f32 v{d(0,0)}, v{d(0,0)}, v22")
    A(f"v_readlane_b32 s78, v{d(0,3)}, 63")
    A("v_lshl_add_u32 v2, v18, 5, s74"); A("v_lshl_add_u32 v4, v3, 4, v2")
    A("v_lshl_add_u32 v2, v3, 10, v2")
    A("v_and_b32 v1, 15, v0"); A("v_lshl_add_u32 v1, v1, 2, s74"); A("v_mov_b32 v45, 0")
    lg.issue("ds_write_b32 v1, v45")
    A("v_cmp_eq_u32 vcc, 0, v0"); A("v_and_b32 v1, 1, v0"); A("v_cmp_eq_u32 s[70:71], 1, v1")
    A("v_mov_b32 v46, s78"); A(f"v_cndmask_b32 v46, v{d(1,0)}, v46, vcc")
    q = 48
    A(f"v_cvt_pk_bf16_f32 v{q}, v{d(1,0)}, v46"); A(f"v_cvt_pk_bf16_f32 v{q+1}, v{d(1,0)}, v{d(1,0)}")
    A(f"v_cvt_pk_bf16_f32 v{q+2}, v{d(1,1)}, v{d(1,0)}"); A(f"v_cvt_pk_bf16_f32 v{q+3}, v{d(1,2)}, v{d(1,1)}")
    lg.issue(f"ds_write_b128 v4, {vr(q,4)} offset:{(16+256)*4}")
    for k in range(2):
        a, b = d(2, 2 * k), d(2, 2 * k + 1); q = 52 + 4 * k
        A(f"v_cvt_pk_bf16_f32 v{q}, v{a}, v{a}"); A(f"v_cvt_pk_bf16_f32 v{q+3}, v{b}, v{a}"); A(f"v_cvt_pk_bf16_f32 v47, v{b}, v{b}")
        A(f"v_mov_b32 v{q+1}, v{q}"); A(f"v_cndmask_b32 v{q+2}, v{q}, v{q+3}, {HF}"); A(f"v_cndmask_b32 v{q+3}, v{q+3}, v47, {HF}")
        lg.issue(f"ds_write_b128 v4, {vr(q,4)} offset:{(16+512+256*k)*4}")
    for k in range(2):
        a, b = d(3, 2 * k), d(3, 2 * k + 1); q = 60 + 8 * k
        A(f"v_permlane32_swap_b32 v{a}, v{b}")
        A(f"v_cvt_pk_bf16_f32 v{q}, v{a}, v{a}"); A(f"v_cvt_pk_bf16_f32 v47, v{b}, v{a}"); A(f"v_cvt_pk_bf16_f32 v{q+6}, v{b}, v{b}")
        for j in range(1, 4): A(f"v_mov_b32 v{q+j}, v{q}")
        A(f"v_mov_b32 v{q+7}, v{q+6}")
        A(f"v_cndmask_b32 v{q+4}, v{q}, v47, s[70:71]"); A(f"v_cndmask_b32 v{q+5}, v47, v{q+6}, s[70:71]")
        lg.issue(f"ds_write_b128 v2, {vr(q,4)} offset:{(16+1024+512*k)*4}")
        lg.issue(f"ds_write_b128 v2, {vr(q+4,4)} offset:{(16+1024+512*k)*4+16}")
    lg.need("prev")
    A("v_cndmask_b32 v44, v44, v45, vcc")
    q = 76
    A(f"v_cvt_pk_bf16_f32 v{q}, v{d(0,0)}, v44")
    for j in range(1, 4): A(f"v_cvt_pk_bf16_f32 v{q+j}, v{d(0,j)}, v{d(0,j-1)}")
    lg.issue(f"ds_write_b128 v4, {vr(q,4)} offset:64")
    AB = 8; BB = 16
    A("v_and_b32 v17, 15, v0"); A("v_lshrrev_b32 v2, 4, v0")
    A("v_lshlrev_b32 v4, 3, v2"); A("v_sub_u32 v4, v17, v4"); A("v_add_u32 v4, 26, v4"); A(f"v_lshl_add_u32 v{AB}, v4, 2, s74")
    for k in range(1, 8): A(f"v_add_u32 v{AB+k}, {1024*k}, v{AB}")
    A(f"v_lshlrev_b32 v4, 5, v17"); A("v_lshl_add_u32 v4, v2, 4, v4"); A(f"v_add_u32 v{BB}, s63, v4")
    lg.drain()
    stamp(A, opt, 5, True)
    Y = 24; FA = [56, 120]; FB = [88, 152]

    def creads(s0):
        fs = s0 & 1; R = []
        for k in range(8):
            a = FA[fs] + 4 * k; b = FB[fs] + 4 * k
            R.append((f"ds_read_b128 {vr(b,4)}, v{BB} offset:{448-64*s0+512*k}", ("b", fs, k)))
            R.append((f"ds_read2_b32 {vr(a,2)}, v{AB+k} offset0:{32*s0+6} offset1:{32*s0+4}", ("a", fs, k)))
            R.append((f"ds_read2_b32 {vr(a+2,2)}, v{AB+k} offset0:{32*s0+2} offset1:{32*s0}", ("a", fs, k)))
        return R
    for r, tg in creads(0): lg.issue(r, tg)
    for s0 in range(8 if not opt.get("noconv") else 1):
        fs = s0 & 1; R = creads(s0 + 1) if s0 < 7 else []; ri = 0
        order = [(s1, nu) for m in range(8) for (s1, nu) in ([(m, x) for x in range(m + 1)] + [(x, m) for x in range(m)]) if s1 + nu < 8]
        for k, (s1, nu) in enumerate(order):
            n = s1 + nu
            lg.need({("a", fs, s1), ("b", fs, nu)})
            first = (s0 == 0 and first_use(order, k))
            A(f"{MF16} {vr(Y+4*n,4)}, {vr(FA[fs]+4*s1,4)}, {vr(FB[fs]+4*nu,4)}, " + ("0" if first else vr(Y + 4 * n, 4)))
            if k >= 8 and ri < len(R): lg.issue(*R[ri]); ri += 1
        while ri < len(R): lg.issue(*R[ri]); ri += 1
        if s0 == opt.get("wlate", 9): wo_groups(range(11, 16), WR)
    if opt.get("sp", 2): A(f"s_setprio {opt.get('sp', 2)}")
    lg.drain()
    lds_add(A, 6)
    stamp(A, opt, 6, True)
    A("v_and_b32 v4, 1, v2"); A("v_lshlrev_b32 v4, 9, v4"); A("v_lshl_add_u32 v4, v17, 5, v4"); A("v_lshrrev_b32 v2, 1, v2"); A("v_lshl_add_u32 v4, v2, 4, v4")
    A(f"s_add_u32 s76, s75, {WS_YT}")
    for k in range(4):
        q = 56 + 4 * k
        for j in range(2):
            A(f"v_cvt_pk_bf16_f32 v{q+2*j}, v{Y+8*k+4*j}, v{Y+8*k+4*j+1}"); A(f"v_cvt_pk_bf16_f32 v{q+2*j+1}, v{Y+8*k+4*j+2}, v{Y+8*k+4*j+3}")
    for k in range(4):
        q = 56 + 4 * k
        A(f"v_permlane16_swap_b32 v{q}, v{q+2}"); A(f"v_permlane16_swap_b32 v{q+1}, v{q+3}")
    A("v_add_u32 v2, s3, v5")
    lds_wait(A, "k_cdone", 6, 4, sleep=1)
    pass
    vm.drain()
    for n, g in enumerate(range(11, 16)):
        if UNIT[g] >= 65536 and UNIT[g - 1] < 65536: A("v_add_u32 v2, 0x10000, v2")
        for j in range(2): lg.issue(f"ds_write_b128 v2, {vr(WR+8*n+4*j,4)} offset:{(UNIT[g]&65535)+1024*j}")
    lg.drain()
    lds_add(A, 5)
    stamp(A, opt, 7, True)
    if opt.get("ggate", 1): lds_wait(A, "k_gdone", 7, 4, sleep=1)
    for k in range(4):
        q = 56 + 4 * k
        vm.issue(f"buffer_store_dwordx4 {vr(q,4)}, v4, s[56:59], s76 offen offset:{1024*k} sc1", "ys")
    A(f"s_add_u32 s23, s23, {WS_FY-WS_FU}"); A(f"s_add_u32 s22, s22, {WS_FY-WS_FU}")
    vm.drain()
    stamp(A, opt, 13, True)
    signal(A, lg, "k_ysig", 15, "s23", 5, 40)
    A("s_cmp_ge_u32 s41, 2" if not opt.get("noytile") else "s_cmp_ge_u32 s41, 0"); A("s_cbranch_scc1 k_sdone")
    YIN = 24; YOUT = 56
    srd(A, 4, 30, 0x800000)
    A("v_lshrrev_b32 v1, 3, v0"); A("v_and_b32 v2, 7, v0"); A("v_mov_b32 v20, v1"); A("v_and_b32 v4, 15, v0"); A("v_lshlrev_b32 v4, 7, v4")
    A("s_lshl_b32 s64, s68, 18"); A("s_lshl_b32 s65, s69, 8"); A("s_add_u32 s64, s64, s65"); A("s_lshl_b32 s65, s41, 7"); A("s_add_u32 s64, s64, s65"); A(f"s_add_u32 s64, s64, {WS_YT}")
    A("v_lshlrev_b32 v18, 15, v1"); A("v_lshl_add_u32 v18, v2, 4, v18")
    A("s_lshl_b32 s66, s69, 19"); A("s_lshl_b32 s65, s41, 18"); A("s_add_u32 s66, s66, s65"); A("s_lshl_b32 s65, s68, 7"); A("s_add_u32 s66, s66, s65"); A("s_add_u32 s66, s66, 2048")
    A("v_lshlrev_b32 v19, 15, v2"); A("v_lshl_add_u32 v19, v1, 4, v19")
    A("s_mov_b32 s70, 0x05040100"); A("s_mov_b32 s71, 0x07060302")
    if opt.get("ygate", 1): lds_wait(A, "k_ygate", 8, 4, sleep=2)
    wait_flags(A, lg, vm, "k_ypoll", 16, 2, "s22", 4, 9, 8)
    stamp(A, opt, 8, True)
    for c in range(8):
        vm.issue(f"buffer_load_dwordx4 {vr(YIN+4*c,4)}, v18, s[56:59], s64 offen sc1", "y")
        if c < 7: A("s_add_u32 s64, s64, 4096")
    vm.need("y")
    om = {0: "", 1: " sc1", 2: " nt", 3: " sc0 sc1"}[opt.get("ost", 0)]
    for c in range(8):
        for k in range(4): A(f"v_perm_b32 v{YOUT+4*c+k}, v{YIN+4*(2*k+1)+(c>>1)}, v{YIN+4*(2*k)+(c>>1)}, s{70+(c&1)}")
        A(f"buffer_store_dwordx4 {vr(YOUT+4*c,4)}, v19, s[4:7], s66 offen" + om)
        if c < 7: A("s_add_u32 s66, s66, 4096")
    A("k_sdone:")
    if opt.get("stamps"):
        A("s_waitcnt vmcnt(0)"); stamp(A, opt, 9, True); write_stamps(A)


HEADER = """; Hedgehog linear attention (QKV GEMM, feature maps, kv/z all-reduce, output GEMM) + S4 long convolution, one launch.
; Kernarg (128 bytes of pointers): x, wqkv, w_phi, wo, u, A_re, A_im, B_re, B_im, C_re, C_im, log_dt, Dskip, out, debug, ws
; waves 0-3: matrix work of the attention branch; waves 4-7: tile loading, SSM kernel generation, convolution""".split("\n")


def build(opt):
    t = assemble_file([(KNAME, 256, 512, 163840, kernel(opt), 256, None)], header=HEADER, align=not opt.get('noalign'))
    if not opt.get("list"): t = t.replace(f"; @launch kernel={KNAME} grid", "; @launch grid")
    return t


if __name__ == "__main__":
    opt = {}
    for a in sys.argv[2:]:
        k, _, v = a.partition("="); opt[k] = int(v) if v else 1
    open(sys.argv[1], "w").write(build(opt))
```
